```python
import torch

def _softmax(x, axis=-1):
    return torch.softmax(x, dim=axis)
def _gelu(x):
    return torch.nn.functional.gelu(x, approximate="tanh")
def _silu(x):
    return torch.nn.functional.silu(x)
def _sigmoid(x):
    return torch.sigmoid(x)
def _layernorm(x, axis=-1, eps=1e-5):
    m = x.mean(dim=axis, keepdim=True)
    v = x.var(dim=axis, keepdim=True, unbiased=False)
    return (x - m) / torch.sqrt(v + eps)
def _scatter_add(tgt, idx, src, axis=0):
    return tgt.clone().index_add_(axis, idx, src)
def _segment_sum(src, seg, n):
    out = torch.zeros((n,) + src.shape[1:], dtype=src.dtype)
    return out.index_add_(0, seg, src)
def _pad(x, pw):
    flat = tuple(v for pair in reversed(pw) for v in pair)
    return torch.nn.functional.pad(x, flat)

kernel_name = 'parallel_sum__ssm_conv_s4d__mixer_channel_mlp__prompt'

def setup_inputs():

    _w = (lambda a: (lambda t: t.to(torch.bfloat16) if t.is_floating_point() else t)(torch.as_tensor(a)))
    def _A_setup():
        Bsz, L, D, N = 1, 2048, 640, 128
        return {
            "u": _w((lambda *s: torch.randn(*s, dtype=torch.bfloat16) * 0.05)(Bsz, L, D)),
            "log_A_real": _w((lambda *s: torch.randn(*s, dtype=torch.bfloat16) * 3.2)(D, N) * 0.5),
            "A_imag": _w((lambda *s: torch.randn(*s, dtype=torch.bfloat16) * 0.05)(D, N) * 3.14),
            "C_real": _w((lambda *s: torch.randn(*s, dtype=torch.bfloat16) * 0.1)(D, N) / N ** 0.5),
            "C_imag": _w((lambda *s: torch.randn(*s, dtype=torch.bfloat16) * 0.2)(D, N) / N ** 0.5),
            "log_dt": _w((lambda *s: torch.randn(*s, dtype=torch.bfloat16) * 0.05)(D) * 0.5 - 4.0),
            "D_skip": _w((lambda *s: torch.randn(*s, dtype=torch.bfloat16) * 0.05)(D)),
        }
    _A_in = _A_setup()

    def _B_setup():
        B, S, D, F = 1, 2048, 640, 1728
        return {
            "x": _w((lambda *s: torch.randn(*s, dtype=torch.bfloat16) * 0.05)(B, S, D)),
            "w1": _w((lambda *s: torch.randn(*s, dtype=torch.bfloat16) * 1.6)(D, F) * (D ** -0.5)),
            "b1": _w((lambda *s: torch.randn(*s, dtype=torch.bfloat16) * 0.8)(F)),
            "w2": _w((lambda *s: torch.randn(*s, dtype=torch.bfloat16) * 0.05)(F, D) * (F ** -0.5)),
            "b2": _w((lambda *s: torch.randn(*s, dtype=torch.bfloat16) * 0.05)(D)),
        }
    _B_in = _B_setup()

    return {
        "A_u": _A_in["u"],
        "A_log_A_real": _A_in["log_A_real"],
        "A_A_imag": _A_in["A_imag"],
        "A_C_real": _A_in["C_real"],
        "A_C_imag": _A_in["C_imag"],
        "A_log_dt": _A_in["log_dt"],
        "A_D_skip": _A_in["D_skip"],
        "B_x": _B_in["x"],
        "B_w1": _B_in["w1"],
        "B_b1": _B_in["b1"],
        "B_w2": _B_in["w2"],
        "B_b2": _B_in["b2"],
    }

def reference(A_u, A_log_A_real, A_A_imag, A_C_real, A_C_imag, A_log_dt, A_D_skip, B_x, B_w1, B_b1, B_w2, B_b2):
    def _A_ref(u, log_A_real, A_imag, C_real, C_imag, log_dt, D_skip):
        L = u.shape[1]
        dt = torch.exp(log_dt)
        A = -torch.exp(log_A_real) + 1j * A_imag
        C = (C_real + 1j * C_imag) * dt[:, None]
        pos = (lambda x, dt: x.to(dt))(torch.arange(L), log_dt.dtype)
        P = torch.exp((A * dt[:, None])[:, :, None] * pos[None, None, :])
        K = 2.0 * torch.einsum("dn,dnl->dl", C, P).real
        L2 = 2 * L
        u_t = (lambda x, *d: x.permute(*d))(u, 0, 2, 1)
        Kf = (lambda x, *a, **k: torch.fft.rfft(x.float(), *a, **k))(K, L2)
        Uf = (lambda x, *a, **k: torch.fft.rfft(x.float(), *a, **k))(u_t, L2)
        y = (lambda x, *a, **k: torch.fft.irfft(x, *a, **k).to(torch.bfloat16))(Uf * Kf[None, :, :], L2)[:, :, :L]
        y = (lambda x, *d: x.permute(*d))(y, 0, 2, 1)
        return y + u * D_skip[None, None, :]

    def _B_ref(x, w1, b1, w2, b2):
        y = _layernorm(x, axis=-1)
        h = _gelu(torch.einsum("bsd,df->bsf", y, w1) + b1)
        return torch.einsum("bsf,fd->bsd", h, w2) + b2

    x = A_u
    xn = _layernorm(x, axis=-1)
    return x + _A_ref(xn, A_log_A_real, A_A_imag, A_C_real, A_C_imag, A_log_dt, A_D_skip) + _B_ref(xn, B_w1, B_b1, B_w2, B_b2)
```

```python
import re

TRANS = ('v_exp_f32', 'v_log_f32', 'v_rcp_f32', 'v_rsq_f32', 'v_sqrt_f32', 'v_sin_f32', 'v_cos_f32')
REG = re.compile(r'(?<![\w.])([vas])(?:(\d+)|\[(\d+):(\d+)\])(?![\w])')

def regs_of(tok):
    out = []
    for m in REG.finditer(tok):
        k = m.group(1)
        if m.group(2) is not None: out.append((k, int(m.group(2))))
        else: out += [(k, i) for i in range(int(m.group(3)), int(m.group(4)) + 1)]
    for sp in ('vcc', 'exec', 'm0'):
        if re.search(r'(?<![\w])' + sp + r'(?![\w])', tok): out.append(('x', sp))
    for sp in ('vcc_lo', 'vcc_hi'):
        if sp in tok: out.append(('x', 'vcc'))
    for sp in ('exec_lo', 'exec_hi'):
        if sp in tok: out.append(('x', 'exec'))
    return out

def split_ops(s):
    out, depth, cur = [], 0, ''
    for ch in s:
        if ch == '[': depth += 1
        if ch == ']': depth -= 1
        if ch == ',' and depth == 0:
            out.append(cur.strip()); cur = ''
        else: cur += ch
    if cur.strip(): out.append(cur.strip())
    return out

class Ins:
    def __init__(self, text):
        self.text = text
        t = text.split(';')[0].strip()
        sp = t.split(None, 1)
        self.op = op = sp[0]
        rest = sp[1] if len(sp) > 1 else ''
        ops = split_ops(rest)
        self.mods = ''
        if ops:
            parts = ops[-1].split(None, 1)
            ops[-1] = parts[0]
            self.mods = parts[1] if len(parts) > 1 else ''
        self.ops = ops
        base = re.sub(r'_(e32|e64|dpp|sdwa)$', '', op)
        self.base = base
        R = [regs_of(o) for o in ops]
        self.w, self.r = [], []
        self.kind = 'other'
        if op.startswith('v_mfma'):
            self.kind = 'mfma'; self.w = R[0]; self.a = R[1]; self.b = R[2]; self.c = R[3]; self.r = R[1] + R[2] + R[3]
            self.passes = 8 if '32x32' in op else 4
        elif op.startswith('v_'):
            self.kind = 'valu'
            if base.startswith('v_cmp'):
                self.w = R[0]; self.r = sum(R[1:], [])
                if base.startswith('v_cmpx'): self.w = self.w + [('x', 'exec')]
            elif base.startswith('v_permlane') and 'swap' in base:
                self.w = R[0] + R[1]; self.r = R[0] + R[1]
            elif base in ('v_add_co_u32', 'v_sub_co_u32', 'v_addc_co_u32', 'v_subb_co_u32'):
                self.w = R[0] + R[1]; self.r = sum(R[2:], [])
            else:
                self.w = R[0]; self.r = sum(R[1:], [])
                if base in ('v_fmac_f32', 'v_dot2c_f32_bf16', 'v_writelane_b32') or 'row_' in self.mods or 'quad_perm' in self.mods or 'wave_' in self.mods:
                    self.r = self.r + R[0]
                if base == 'v_cndmask_b32' and len(ops) == 3: self.r.append(('x', 'vcc'))
            self.trans = base in TRANS
            self.dpp = ('row_' in self.mods or 'quad_perm' in self.mods or 'wave_' in self.mods)
        elif op.startswith('ds_'):
            self.kind = 'ds'
            if op.startswith('ds_read') or op.startswith('ds_bpermute') or op.startswith('ds_swizzle'):
                self.w = R[0]; self.r = sum(R[1:], [])
            else: self.r = sum(R, [])
        elif op.startswith('buffer_') or op.startswith('global_'):
            self.kind = 'vmem'
            self.lds = bool(re.search(r'(?<![\w])lds(?![\w])', self.mods)) or '_lds_' in op
            self.store = '_store' in op or '_atomic' in op
            if self.lds: self.r = sum(R, []) + [('x', 'm0')]
            elif self.store: self.r = sum(R, [])
            else: self.w = R[0]; self.r = sum(R[1:], [])
            if self.store:
                self.data = R[0] if op.startswith('buffer_') else R[1]
        elif op.startswith('s_load') or op.startswith('s_memtime') or op.startswith('s_memrealtime') or op.startswith('s_buffer_load'):
            self.kind = 'smem'; self.w = R[0]; self.r = sum(R[1:], [])
        elif op.startswith('s_'):
            self.kind = 'salu'
            if op.startswith('s_cmp') or op.startswith('s_bitcmp') or op in ('s_waitcnt', 's_nop', 's_barrier', 's_branch', 's_endpgm', 's_sleep', 's_setprio') or op.startswith('s_cbranch'):
                self.r = sum(R, [])
            else:
                self.w = R[0] if R else []; self.r = sum(R[1:], [])
                if 'saveexec' in op: self.w = self.w + [('x', 'exec')]; self.r = self.r + [('x', 'exec')]
                if op.startswith('s_cmov') or op in ('s_addk_i32', 's_mulk_i32'): self.r = self.r + R[0]
        self.ws, self.rs = set(self.w), set(self.r)

def states(ins):
    if ins.op == 's_nop': return int(ins.ops[0], 0) + 1
    return 1

class Emit:
    def __init__(self):
        self.out = []
        self.hist = []
        self.vm = []
        self.lg = []
        self.nins = 0
        self.nnop = 0
    def raw(self, s):
        self.out.append(s)
    def comment(self, s):
        self.out.append('; ' + s)
    def label(self, name):
        self.out.append(name + ':')
    def _put(self, ins):
        self.out.append('    ' + ins.text)
        self.hist.append(ins)
        if len(self.hist) > 24: self.hist.pop(0)
        self.nins += 1
    def need(self, ins):
        req = 0; dist = 0
        for p in reversed(self.hist):
            n = 0
            if p.kind == 'mfma':
                big = 12 if p.passes == 8 else 8
                if ins.kind == 'mfma':
                    if p.ws & (set(ins.a) | set(ins.b)): n = big
                    elif p.ws & set(ins.c) and not (p.w == ins.c and p.passes == ins.passes): n = big - 2
                    elif p.ws & ins.ws and p.w != ins.w: n = big - 2
                elif ins.kind in ('valu', 'ds', 'vmem'):
                    if p.ws & (ins.rs | ins.ws): n = big
                    elif ins.kind == 'valu' and set(p.c) & ins.ws: n = 7 if p.passes == 8 else 3
            elif p.kind == 'valu':
                vw = {r for r in p.ws if r[0] in 'va'}
                sw = {r for r in p.ws if r[0] == 's' or r == ('x', 'vcc')}
                if ins.kind == 'mfma' and vw & ins.rs: n = 2
                if ins.kind == 'mfma' and ('x', 'exec') in p.ws: n = 4
                if ins.kind == 'valu':
                    if p.trans and not ins.trans and vw & ins.rs: n = max(n, 1)
                    if p.trans and ins.trans and vw & ins.rs: n = max(n, 1)
                    if ins.dpp and vw & ins.rs: n = max(n, 2)
                    if ins.base.startswith('v_permlane') and vw & ins.rs: n = max(n, 2)
                    if ins.base in ('v_readlane_b32', 'v_readfirstlane_b32') and vw & ins.rs: n = max(n, 1)
                    if sw & ins.rs: n = max(n, 4 if ins.base in ('v_readlane_b32', 'v_writelane_b32') else 2)
                    if ('x', 'exec') in p.ws: n = max(n, 5)
                if ins.kind == 'vmem' and sw & ins.rs: n = max(n, 5)
                if ins.kind in ('salu', 'smem') and sw & ins.rs: n = max(n, 1)
            elif p.kind == 'salu':
                if ('x', 'm0') in p.ws and ins.kind == 'vmem' and ins.lds: n = 1
            elif p.kind == 'vmem':
                if p.store and len(p.data) > 2 and set(p.data) & ins.ws: n = 2
            req = max(req, n - dist)
            dist += states(p)
            if dist >= 14: break
        return req
    def _wait(self, vm=None, lg=None):
        s = 's_waitcnt'
        if vm is not None: s += ' vmcnt(%d)' % vm
        if lg is not None: s += ' lgkmcnt(%d)' % lg
        self._put(Ins(s))
    def _vm_drop(self, idx):
        n = sum(1 for e in self.vm[idx + 1:] if not e['opt'])
        assert n <= 63
        self.vm = self.vm[idx + 1:]
        return n
    def _lg_drop(self, idx):
        if any(e['smem'] for e in self.lg):
            self.lg = []; return 0
        n = len(self.lg) - idx - 1
        n = min(n, 15)
        self.lg = self.lg[len(self.lg) - n:] if n else []
        return n
    def __call__(self, text, tag=None, opt=False):
        for line in text.split('\n'):
            line = line.strip()
            if not line: continue
            if line.startswith(';'): self.out.append(line); continue
            if line.endswith(':') and ' ' not in line: self.label(line[:-1]); continue
            self.one(line, tag, opt)
    def one(self, line, tag=None, opt=False):
        ins = Ins(line)
        touch = ins.rs | ins.ws
        vi = max([i for i, e in enumerate(self.vm) if e['regs'] & touch], default=-1)
        li = max([i for i, e in enumerate(self.lg) if e['regs'] & touch], default=-1)
        if vi >= 0 or li >= 0:
            self._wait(self._vm_drop(vi) if vi >= 0 else None, self._lg_drop(li) if li >= 0 else None)
        n = self.need(ins)
        while n > 0:
            k = min(n, 16)
            self._put(Ins('s_nop %d' % (k - 1))); n -= k; self.nnop += 1
        if ins.kind == 'vmem':
            if len(self.vm) >= 63:
                self._wait(self._vm_drop(len(self.vm) - 63 + 0), None)
            self.vm.append(dict(regs=set(ins.ws), tag=tag, opt=opt))
        elif ins.kind == 'ds':
            self.lg.append(dict(regs=set(ins.ws), smem=False))
        elif ins.kind == 'smem':
            self.lg.append(dict(regs=set(ins.ws), smem=True))
        elif ins.op == 's_waitcnt':
            m = re.search(r'vmcnt\((\d+)\)', line)
            if m:
                k = int(m.group(1));
                if k == 0: self.vm = []
                else: raise ValueError('use wait_vm')
            m = re.search(r'lgkmcnt\((\d+)\)', line)
            if m:
                if int(m.group(1)) == 0: self.lg = []
                else: raise ValueError('use wait_lg')
        self._put(ins)
    def wait_vm(self, tag, lg0=False):
        tags = tag if isinstance(tag, (tuple, list)) else (tag,)
        vi = max([i for i, e in enumerate(self.vm) if e['tag'] in tags], default=-1)
        lg = None
        if lg0 and self.lg: lg = 0; self.lg = []
        if vi >= 0 or lg is not None:
            self._wait(self._vm_drop(vi) if vi >= 0 else None, lg)
    def wait_lg0(self):
        if self.lg:
            self.lg = []; self._wait(None, 0)
    def barrier(self):
        self.wait_lg0()
        self('s_barrier')
    def snapshot(self):
        return ([dict(e) for e in self.vm], [dict(e) for e in self.lg], list(self.hist))
    def restore(self, s):
        self.vm = [dict(e) for e in s[0]]; self.lg = [dict(e) for e in s[1]]; self.hist = list(s[2])
    def fence(self):
        self._put(Ins('s_nop 7')); self._put(Ins('s_nop 3')); self.hist = []
    def text(self):
        return '\n'.join(self.out) + '\n'

def interleave(main, extra, start=0, every=1, per=1):
    out, k = [], 0
    for i, m in enumerate(main):
        out.append(m)
        if i >= start and (i - start) % every == 0:
            out += extra[k:k + per]; k += per
    out += extra[k:]
    return out
```

```python
import numpy as np
def bf16_bits(j):
    u = np.float32(j).view(np.uint32)
    return int((int(u) + 0x7FFF + ((int(u) >> 16) & 1)) >> 16)
def cidx(t):
    return t if t < 128 else bf16_bits(t) - 0x4300 + 128
ZERO = 644
B0, B1, B2, B3, B4, B5, BC = 544, 592, 640, 688, 752, 832, 896
def r_src(P):
    if P < 544:
        tau = 543 - P
        return cidx(tau) if tau <= 514 else ZERO
    for B, v0, M in ((B0, 528, 31), (B1, 516, 32), (B2, 520, 32), (B3, 524, 32)):
        if B + 16 <= P < B + 48:
            m = 47 - (P - B)
            return cidx(v0 + 16 * m) if m < M else ZERO
    for B, v0 in ((B4, 1040), (B5, 1032)):
        if B <= P < B + 64:
            return cidx(v0 + 16 * (63 - (P - B)))
    if BC + 19 <= P <= BC + 25: return cidx(1024)
    return ZERO
def gather_table():
    t = np.array([[2 * r_src(8 * E + k) for k in range(10)] for E in range(128)], np.uint32)
    dw = t[:, 0::2] | (t[:, 1::2] << 16)
    return list(dw[:, :4].ravel()) + list(dw[:, 4])
def run(lo, hi): return sum(1 << n for n in range(lo, hi + 1))
BANDS = dict(b5=run(21, 25), b3a=run(26, 28), b3b=run(18, 20), b9=run(19, 27), b7=run(20, 26))
if __name__ == '__main__':
    assert cidx(2048) == 640 and cidx(1024) == 512 and cidx(513) == 384
    print(len(gather_table()), {k: hex(v) for k, v in BANDS.items()})
```

```python
import sys, os
sys.path.insert(0, os.path.dirname(os.path.abspath(__file__)))
from emit import Emit, interleave
import tables as T

KN = 'parallel_sum__ssm_conv_s4d__mixer_channel_mlp__prompt_kernel'
OPT = dict(stamps=0)
for a in sys.argv[2:]:
    k, v = a.split('='); OPT[k] = int(v)

FA, FW, FH, FY = 0, 1024, 2048, 6144
STATS = 0x10000
UOFF, YOFF, W2P, HOFF = 0x100000, 0x400000, 0x700000, 0xA00000
STAMP = 0x1800000
WSSZ = 0x2000000
OOB = 0x10000000
SPIN = 20000
SLOT = 32768
LNS = 131072
RARR = 131072
UARR = RARR + 8448
KC = UARR + 9280
CSX = KC + 9216
assert CSX + 512 <= 163840
KTAB = 0
KTAB_SP = 0
PACK = 61440
XCH = 65536
RED = 0
CHP = 57 * 528
LDS_BYTES = 163840

LOG2E = 0x3fb8aa3b
INV2PI = 0x3e22f983

SX, SW1, SWS, SH, SW2, SO = 4, 8, 12, 16, 20, 24
sW, sXCD, sJ, sMI, sNI, sM64, sN80, sPAIR = 28, 29, 30, 31, 32, 33, 34, 35
P_U, P_LA, P_AI, P_CR, P_CI, P_LDT, P_DSK, P_BX, P_W1, P_B1, P_W2, P_B2, P_OUT, P_DBG, P_WS = range(36, 66, 2)
sT = list(range(66, 80))
sKS = 80
sTB8, sK, sXB, sWB, sM0, sIT = 94, 95, 96, 97, 98, 99
sPC = 50
sST = 100

def srd(n): return 's[%d:%d]' % (n, n + 3)
def sp(n): return 's[%d:%d]' % (n, n + 1)
def v(n, k=1): return 'v%d' % n if k == 1 else 'v[%d:%d]' % (n, n + k - 1)
def a(n, k=1): return 'a%d' % n if k == 1 else 'a[%d:%d]' % (n, n + k - 1)

vL, vL16 = 0, 1
vGI = 2
vPAR = 7
vT0, vT1, vT2 = 13, 14, 15
vBAND = 192
vSEL = 212
vW2O = 220
vSTAMP = 231
vSTASH = 232

e = Emit()
nlab = [0]
def lab(s):
    nlab[0] += 1
    return 'L_%s_%d' % (s, nlab[0])

nstamp = [0]
def stamp(i):
    if not OPT['stamps']: return
    e('s_memrealtime %s' % sp(sST))
    e('v_writelane_b32 %s, s%d, %d' % (v(vSTAMP), sST, i))

def stash_reg(j, db):
    n = (j * 5 + db) * 4
    return a(n, 4) if n < 256 else v(vSTASH + n - 256, 4)

def stash_loads():
    L = []
    for j in range(14):
        L.append(('s_mul_i32 s%d, s%d, 5' % (sT[12 + (j & 1)], sKS + j), None))
        for db in range(5):
            L.append(('buffer_load_dwordx4 %s, %s, %s, s%d offen offset:%d sc1' % (stash_reg(j, db), v(vW2O + (db == 4)), srd(SW2), sT[12 + (j & 1)], (db & 3) * 1024), 'stash'))
    G = []
    for t in L:
        if t[1] is None: G.append([t])
        elif G and len(G[-1]) == 1 and G[-1][0][1] is None: G[-1].append(t)
        else: G.append([t])
    return G

def put(item):
    if isinstance(item, list):
        for x in item: put(x)
    elif isinstance(item, tuple): e(item[0], tag=item[1])
    elif callable(item): item()
    else: e(item)

def poll(vdst, nreg, load, name):
    ok, lp = lab(name + '_ok'), lab(name + '_spin')
    def cmp(emit):
        if nreg == 1: emit('v_cmp_ne_u32 vcc, 1, %s' % v(vdst))
        else:
            emit('v_and_b32 %s, %s, %s' % (v(vdst), v(vdst), v(vdst + 1)))
            for k in range(2, nreg): emit('v_and_b32 %s, %s, %s' % (v(vdst), v(vdst), v(vdst + k)))
            emit('v_cmp_ne_u32 vcc, 1, %s' % v(vdst))
    cmp(e)
    e('s_cbranch_vccz %s' % ok)
    r = lambda s: e.raw('    ' + s)
    r('s_mov_b32 s%d, %d' % (sT[11], SPIN))
    e.raw(lp + ':')
    r('s_sleep 1'); r(load); r('s_waitcnt vmcnt(0)')
    cmp(r)
    r('s_cbranch_vccz %s' % ok)
    r('s_sub_u32 s%d, s%d, 1' % (sT[11], sT[11])); r('s_cmp_lg_u32 s%d, 0' % sT[11]); r('s_cbranch_scc1 %s' % lp)
    e.raw(ok + ':')

def flag_store(soff_expr_sgpr):
    e('v_mov_b32 %s, 1' % v(vT0))
    e('v_mov_b32 %s, 0' % v(vT1))
    e('s_mov_b64 exec, 1')
    e('buffer_store_dword %s, %s, %s, s%d offen sc1' % (v(vT0), v(vT1), srd(SWS), soff_expr_sgpr), tag='flag')
    e('s_mov_b64 exec, -1')

def prologue():
    e('s_cmp_ge_u32 s2, 256')
    e('s_cbranch_scc1 L_end')
    e('s_load_dwordx16 s[36:51], s[0:1], 0')
    e('s_load_dwordx8 s[52:59], s[0:1], 64')
    e('s_load_dwordx4 s[60:63], s[0:1], 96')
    e('s_load_dwordx2 s[64:65], s[0:1], 112')
    if OPT['stamps']:
        e('v_mov_b32 %s, 0' % v(vSTAMP))
    e('v_lshrrev_b32 v13, 6, v0')
    e('v_and_b32 v0, 63, v0')
    e('v_readfirstlane_b32 s%d, v13' % sW)
    e('s_and_b32 s%d, s2, 7' % sXCD)
    e('s_lshr_b32 s%d, s2, 3' % sJ)
    e('v_lshlrev_b32 v1, 4, v0')
    e('s_getpc_b64 s[66:67]')
    e.raw('L_pc:')
    e('s_lshl_b32 s68, s%d, 2' % sJ)
    e('s_add_u32 s68, s68, s%d' % sW)
    e('s_lshl_b32 s68, s68, 9')
    e('v_and_b32 v13, 3, v0')
    e('v_lshlrev_b32 v13, 7, v13')
    e('v_add_u32 v13, s68, v13')
    e('v_min_u32 v13, L_tab_end-L_pc-4, v13')
    e('global_load_dword v230, v13, s[66:67]', tag='pf')
    e('s_and_b32 s68, s%d, 1' % sW)
    e('s_lshl_b32 s69, s68, 10')
    e('s_add_u32 s69, s69, L_tab-L_pc')
    e('v_add_u32 v13, s69, v1')
    e('global_load_dwordx4 v[2:5], v13, s[66:67]', tag='tab')
    e('s_lshl_b32 s69, s68, 8')
    e('s_add_u32 s69, s69, L_tab-L_pc+2048')
    e('v_lshl_add_u32 v13, v0, 2, s69')
    e('global_load_dword v6, v13, s[66:67]', tag='tab')
    e('s_lshl_b32 s%d, s%d, 5' % (sTB8, sXCD))
    e('s_add_u32 s%d, s%d, s%d' % (sTB8, sTB8, sJ))
    e('s_and_b32 s68, s%d, 3' % sJ)
    e('s_lshr_b32 s%d, s%d, 2' % (sN80, sJ))
    e('s_lshl_b32 s%d, s%d, 2' % (sM64, sXCD))
    e('s_add_u32 s%d, s%d, s68' % (sM64, sM64))
    e('s_lshr_b32 s69, s%d, 1' % sXCD)
    e('s_lshl_b32 s69, s69, 2')
    e('s_add_u32 s%d, s69, s68' % sMI)
    e('s_and_b32 s69, s%d, 1' % sXCD)
    e('s_mul_i32 s69, s69, 7')
    e('s_add_u32 s%d, s69, s%d' % (sNI, sN80))
    e('s_mul_i32 s%d, s%d, 40' % (sPAIR, sXCD))
    e('s_mul_i32 s69, s%d, 23' % sN80)
    e('s_lshr_b32 s69, s69, 4')
    e('s_mul_i32 s70, s68, 5')
    e('s_lshr_b32 s70, s70, 1')
    e('s_add_u32 s%d, s69, s70' % sK)
    e('s_sub_u32 s69, s%d, 10' % sK)
    e('s_cmp_ge_u32 s%d, 10' % sK)
    e('s_cselect_b32 s%d, s69, s%d' % (sK, sK))
    e('s_mul_i32 s69, s%d, 7' % sN80)
    e('s_lshr_b32 s69, s69, 2')
    e('s_mul_i32 s70, s68, 7')
    e('s_lshr_b32 s70, s70, 1')
    e('s_add_u32 s69, s69, s70')
    e('s_lshl_b32 s69, s69, 2')
    e('s_add_u32 s69, s69, s%d' % sW)
    for j in range(14):
        e('s_sub_u32 s70, s69, 56')
        e('s_cmp_ge_u32 s69, 56')
        e('s_cselect_b32 s69, s70, s69')
        e('s_lshl_b32 s70, s69, 10')
        e('s_cmp_lt_u32 s69, 54')
        e('s_cselect_b32 s%d, s70, %d' % (sKS + j, OOB))
        e('s_add_u32 s69, s69, 4')
    e('v_lshrrev_b32 v13, 5, v0')
    e('v_and_b32 v14, 31, v0')
    e('v_mul_u32_u24 v15, 1280, v13')
    e('v_lshl_add_u32 v76, v14, 4, v15')
    e('v_lshl_add_u32 v77, v14, 3, v15')
    for s, p, n in ((SX, P_U, 2621440), (SW1, P_W1, 2211840), (SWS, P_WS, WSSZ), (SO, P_OUT, 2621440)):
        e('s_mov_b32 s%d, s%d' % (s, p)); e('s_mov_b32 s%d, s%d' % (s + 1, p + 1))
        e('s_mov_b32 s%d, %d' % (s + 2, n)); e('s_mov_b32 s%d, 0x20000' % (s + 3))
    e('s_mul_i32 s68, s%d, 10240' % sTB8)
    e('s_mul_i32 s69, s%d, 2560' % sW)
    e('s_add_u32 s68, s68, s69')
    e('buffer_load_dwordx4 v[40:43], v76, %s, s68 offen' % srd(SX), tag='ln')
    e('buffer_load_dwordx4 v[44:47], v76, %s, s68 offen offset:512' % srd(SX), tag='ln')
    e('buffer_load_dwordx2 v[48:49], v77, %s, s68 offen offset:1024' % srd(SX), tag='ln')
    stamp(0)
    e('s_mul_i32 s68, s%d, %d' % (sMI, 8 * 55296))
    e('s_add_u32 s68, s68, %d' % HOFF)
    e('s_add_u32 s%d, s%d, s68' % (SH, P_WS)); e('s_addc_u32 s%d, s%d, 0' % (SH + 1, P_WS + 1))
    e('s_mov_b32 s%d, %d' % (SH + 2, 8 * 55296)); e('s_mov_b32 s%d, 0x20000' % (SH + 3))
    e('s_mul_i32 s68, s%d, %d' % (sN80, 54 * 5120))
    e('s_add_u32 s68, s68, %d' % W2P)
    e('s_add_u32 s%d, s%d, s68' % (SW2, P_WS)); e('s_addc_u32 s%d, s%d, 0' % (SW2 + 1, P_WS + 1))
    e('s_mov_b32 s%d, %d' % (SW2 + 2, 54 * 5120)); e('s_mov_b32 s%d, 0x20000' % (SW2 + 3))
    e('v_mov_b32 %s, v1' % v(vW2O))
    e('v_add_u32 %s, 4096, v1' % v(vW2O + 1))

def consts():
    L = []
    L += ['v_and_b32 v13, 15, v0', 'v_lshrrev_b32 v14, 4, v0', 'v_lshlrev_b32 v14, 3, v14',
          'v_sub_u32 v15, v14, v13', 'v_add_u32 v15, 15, v15', 'v_min_u32 v15, 31, v15']
    for bi, nm in enumerate(('b5', 'b3a', 'b3b', 'b9', 'b7')):
        L += ['s_mov_b32 s68, %d' % T.BANDS[nm], 'v_lshrrev_b32 v78, v15, s68']
        for q in range(4):
            d = vBAND + 4 * bi + q
            L += ['v_bfe_u32 %s, v78, %d, 2' % (v(d), 2 * q), 'v_lshl_or_b32 %s, %s, 15, %s' % (v(d), v(d), v(d)),
                  'v_and_b32 %s, 0x10001, %s' % (v(d), v(d)), 'v_mul_u32_u24 %s, 0x3f80, %s' % (v(d), v(d))]
    for half in range(2):
        L += ['v_sub_u32 v15, v13, v14', 'v_add_u32 v15, %d, v15' % (16 * half), 'v_and_b32 v78, 1, v15',
              'v_lshlrev_b32 v78, 4, v78', 'v_mov_b32 v79, 0x3f80', 'v_lshlrev_b32 v78, v78, v79', 'v_lshrrev_b32 v15, 1, v15']
        for q in range(4):
            L += ['v_cmp_eq_u32 vcc, %d, v15' % q, 'v_cndmask_b32 %s, 0, v78, vcc' % v(vSEL + 4 * half + q)]
    return L

def param_loads(first):
    L = []
    L.append('s_lshl_b32 s68, s%d, 1' % sPAIR)
    L.append('s_lshr_b32 s69, s%d, 1' % sW)
    L.append('s_add_u32 s68, s68, s69')
    L.append('s_lshl_b32 s70, s68, 1')
    L.append('s_lshl_b32 s68, s68, 8')
    L.append('s_and_b32 s69, s%d, 1' % sW)
    L.append('s_lshl_b32 s69, s69, 7')
    L.append('s_add_u32 s68, s68, s69')
    L.append('v_lshl_add_u32 v13, v0, 1, s68')
    L.append('v_mov_b32 v14, s70')
    for k, p in enumerate((P_LA, P_AI, P_CR, P_CI)):
        L.append(('global_load_ushort %s, v13, %s' % (v(vPAR + k), sp(p)), 'par'))
    L.append(('global_load_ushort %s, v14, %s' % (v(vPAR + 4), sp(P_LDT)), 'par'))
    L.append(('global_load_ushort %s, v14, %s' % (v(vPAR + 5), sp(P_DSK)), 'par'))
    return L

def red32(r, t):
    e('v_add_f32_dpp %s, %s, %s quad_perm:[1,0,3,2] row_mask:0xf bank_mask:0xf' % (v(r), v(r), v(r)))
    e('v_add_f32_dpp %s, %s, %s quad_perm:[2,3,0,1] row_mask:0xf bank_mask:0xf' % (v(r), v(r), v(r)))
    e('v_add_f32_dpp %s, %s, %s row_half_mirror row_mask:0xf bank_mask:0xf' % (v(r), v(r), v(r)))
    e('v_add_f32_dpp %s, %s, %s row_mirror row_mask:0xf bank_mask:0xf' % (v(r), v(r), v(r)))
    e('v_mov_b32 %s, %s' % (v(t), v(r)))
    e('v_permlane16_swap_b32 %s, %s' % (v(r), v(t)))
    e('v_add_f32 %s, %s, %s' % (v(r), v(r), v(t)))

def layernorm(extra1, extra2):
    X = 52
    for k in range(10):
        e('v_lshlrev_b32 %s, 16, %s' % (v(X + 2 * k), v(40 + k)))
        e('v_and_b32 %s, 0xffff0000, %s' % (v(X + 2 * k + 1), v(40 + k)))
    put(extra1)
    e('v_pk_add_f32 v[72:73], v[52:53], v[54:55]')
    e('v_pk_add_f32 v[74:75], v[56:57], v[58:59]')
    for k in range(4, 10, 2):
        e('v_pk_add_f32 v[72:73], v[72:73], %s' % v(X + 2 * k, 2))
        e('v_pk_add_f32 v[74:75], v[74:75], %s' % v(X + 2 * k + 2, 2))
    e('v_pk_add_f32 v[72:73], v[72:73], v[74:75]')
    e('v_add_f32 v72, v72, v73')
    red32(72, 73)
    e('v_mul_f32 v72, 0x3acccccd, v72')
    for k in range(10):
        e('v_pk_add_f32 %s, %s, v[72:73] op_sel_hi:[1,0] neg_lo:[0,1] neg_hi:[0,1]' % (v(X + 2 * k, 2), v(X + 2 * k, 2)))
    e('v_pk_mul_f32 v[74:75], v[52:53], v[52:53]')
    e('v_pk_mul_f32 v[50:51], v[54:55], v[54:55]')
    for k in range(2, 10, 2):
        e('v_pk_fma_f32 v[74:75], %s, %s, v[74:75]' % (v(X + 2 * k, 2), v(X + 2 * k, 2)))
        e('v_pk_fma_f32 v[50:51], %s, %s, v[50:51]' % (v(X + 2 * k + 2, 2), v(X + 2 * k + 2, 2)))
    e('v_pk_add_f32 v[74:75], v[74:75], v[50:51]')
    e('v_add_f32 v74, v74, v75')
    red32(74, 75)
    put(extra2)
    e('v_mul_f32 v74, 0x3acccccd, v74')
    e('v_add_f32 v75, 0x3727c5ac, v74')
    e('v_rsq_f32 v50, v75')
    e('s_mul_i32 s68, s%d, 2688' % sW)
    e('s_add_u32 s68, s68, %d' % LNS)
    e('v_lshrrev_b32 v13, 5, v0')
    e('v_lshlrev_b32 v15, 6, v13')
    e('v_add3_u32 v76, v76, v15, s68')
    e('v_add3_u32 v77, v77, v15, s68')
    for k in range(10):
        e('v_pk_mul_f32 %s, %s, v[50:51] op_sel_hi:[1,0]' % (v(X + 2 * k, 2), v(X + 2 * k, 2)))
    for k in range(10):
        e('v_cvt_pk_bf16_f32 %s, %s, %s' % (v(40 + k), v(X + 2 * k), v(X + 2 * k + 1)))
    e('ds_write_b128 v76, v[40:43]')
    e('ds_write_b128 v76, v[44:47] offset:512')
    e('ds_write_b64 v77, v[48:49] offset:1024')
    e('v_mul_f32 v74, v74, v50')
    e('v_mul_f32 v74, v74, v50')
    e('v_add_f32 v74, 0x3727c5ac, v74')
    e('v_rsq_f32 v74, v74')
    e('v_bfe_u32 v14, v0, 2, 2')
    e('v_mul_u32_u24 v14, 1344, v14')
    e('v_and_b32 v15, 3, v0')
    e('v_lshl_add_u32 v14, v15, 3, v14')
    e('v_mul_f32 v74, v74, v50')
    e('v_mul_f32 v75, v74, v72')
    e('v_lshrrev_b32 v15, 4, v0')
    e('s_lshl_b32 s68, s%d, 7' % sW)
    e('s_add_u32 s68, s68, %d' % LNS)
    e('v_lshl_add_u32 v76, v15, 5, v14')
    e('v_add_u32 v76, s68, v76')
    e('v_and_b32 v15, 1, v15')
    e('s_lshl_b32 s68, s%d, 6' % sW)
    e('s_add_u32 s68, s68, %d' % (LNS + 1024))
    e('v_lshl_add_u32 v77, v15, 5, v14')
    e('v_add_u32 v77, s68, v77')
    e('v_lshlrev_b32 v13, 3, v13')
    e('s_lshl_b32 s68, s%d, 6' % sTB8)
    e('s_lshl_b32 s69, s%d, 4' % sW)
    e('s_add_u32 s68, s68, s69')
    e('s_add_u32 s68, s68, %d' % STATS)
    e('s_mov_b32 exec_lo, 1'); e('s_mov_b32 exec_hi, 1')
    e('buffer_store_dwordx2 v[74:75], v13, %s, s68 offen sc1' % srd(SWS), tag='u')
    e('s_mov_b64 exec, -1')
    e.barrier()
    for r, (ad, off) in enumerate(((76, 0), (76, 512), (77, 0))):
        e('ds_read_b64_tr_b16 %s, %s offset:%d' % (v(52 + 4 * r, 2), v(ad), off))
        e('ds_read_b64_tr_b16 %s, %s offset:%d' % (v(54 + 4 * r, 2), v(ad), off + 4 * 1344))
    e('s_mul_i32 s68, s%d, 10240' % sTB8)
    e('s_add_u32 s68, s68, %d' % UOFF)
    e('s_lshl_b32 s69, s%d, 10' % sW)
    e('s_add_u32 s69, s69, s68')
    e('s_add_u32 s70, s69, 4096')
    e('s_lshl_b32 s71, s%d, 9' % sW)
    e('s_add_u32 s71, s71, s68')
    e('s_add_u32 s71, s71, 8192')
    e('buffer_store_dwordx4 v[52:55], v1, %s, s69 offen sc1' % srd(SWS), tag='u')
    e('buffer_store_dwordx4 v[56:59], v1, %s, s70 offen sc1' % srd(SWS), tag='u')
    e('s_mov_b32 exec_hi, 0')
    e('buffer_store_dwordx4 v[60:63], v1, %s, s71 offen sc1' % srd(SWS), tag='u')
    e('s_mov_b32 exec_hi, -1')

READY_LOAD = 'global_load_dword v228, v229, %s sc1' % sp(P_DBG)
def ready_issue():
    e('v_mov_b32 v229, 0')
    e(READY_LOAD, tag='rdy')
def fa_publish():
    skip = lab('fa_skip')
    e('s_cmp_lg_u32 s%d, 0' % sW)
    e.wait_vm('rdy')
    e('s_cbranch_scc1 %s' % skip)
    poll(228, 1, READY_LOAD, 'rdy')
    e('s_lshl_b32 s68, s%d, 2' % sTB8)
    e('v_mov_b32 %s, 1' % v(vT0))
    e('v_mov_b32 %s, 0' % v(vT1))
    e('s_mov_b64 exec, 1')
    e('buffer_store_dword %s, %s, %s, s68 offen sc1' % (v(vT0), v(vT1), srd(SWS)), tag='flag', opt=True)
    e('s_mov_b64 exec, -1')
    e.raw(skip + ':')

vXD, vWD = 16, 20
vXB, vWA = 24, 26
vONE = 36
vACC = 40
vCS = 104
vFP, vFQ = 112, 144
vSTAT, vB1R = 176, 184

def g1_addr():
    L = []
    L += ['v_lshrrev_b32 v13, 3, v0', 'v_mul_u32_u24 v13, 1280, v13', 'v_lshrrev_b32 v14, 4, v0', 'v_and_b32 v15, 7, v0',
          'v_xor_b32 v15, v15, v14', 's_mul_i32 s68, s%d, %d' % (sW, 32 * 1280)]
    L += ['v_lshl_add_u32 v13, v15, 4, v13', 'v_add_u32 %s, s68, v13' % v(vXD), 'v_xor_b32 v13, 64, %s' % v(vXD),
          'v_add_u32 %s, %d, v13' % (v(vXD + 1), 8 * 1280), 'v_add_u32 %s, %d, %s' % (v(vXD + 2), 16 * 1280, v(vXD)),
          'v_add_u32 %s, %d, v13' % (v(vXD + 3), 24 * 1280)]
    L += ['v_mul_u32_u24 v13, 3456, v14', 'v_bfe_u32 v15, v0, 1, 3', 'v_xor_b32 v15, v15, v14', 'v_lshl_add_u32 v13, v15, 5, v13',
          'v_and_b32 v15, 1, v0', 'v_lshl_add_u32 v13, v15, 4, v13', 's_mul_i32 s68, s%d, %d' % (sW, 16 * 3456)]
    L += ['v_add_u32 %s, s68, v13' % v(vWD), 'v_add_u32 %s, %d, %s' % (v(vWD + 1), 4 * 3456, v(vWD))]
    L += ['v_mul_u32_u24 v13, 3456, v14', 'v_bfe_u32 v15, v0, 1, 3', 'v_xor_b32 v15, v15, v14', 'v_xor_b32 v15, 4, v15',
          'v_lshl_add_u32 v13, v15, 5, v13', 'v_and_b32 v15, 1, v0', 'v_lshl_add_u32 v13, v15, 4, v13',
          's_add_u32 s68, s68, %d' % (8 * 3456), 'v_add_u32 %s, s68, v13' % v(vWD + 2), 'v_add_u32 %s, %d, %s' % (v(vWD + 3), 4 * 3456, v(vWD + 2))]
    L += ['s_mul_i32 s%d, s%d, %d' % (sXB, sMI, 128 * 1280), 's_lshl_b32 s%d, s%d, 8' % (sWB, sNI), 's_lshl_b32 s%d, s%d, 12' % (sM0, sW)]
    return L

def g1_read_addr():
    L = []
    L += ['v_and_b32 v13, 15, v0', 'v_lshrrev_b32 v15, 1, v13', 'v_lshrrev_b32 v14, 4, v0', 'v_xor_b32 v15, v15, v14',
          'v_lshlrev_b32 v13, 7, v13', 'v_lshl_add_u32 v13, v15, 4, v13', 's_lshr_b32 s68, s%d, 1' % sW, 's_lshl_b32 s69, s68, 13',
          'v_add_u32 %s, s69, v13' % v(vXB), 'v_xor_b32 %s, 64, %s' % (v(vXB + 1), v(vXB))]
    L += ['v_bfe_u32 v13, v0, 2, 2', 'v_and_b32 v15, 1, v14', 'v_lshl_add_u32 v15, v15, 2, v13', 'v_lshl_add_u32 v13, v14, 3, v13',
          'v_lshlrev_b32 v13, 8, v13', 's_and_b32 s69, s%d, 1' % sW, 's_lshl_b32 s69, s69, 2', 's_lshl_b32 s68, s68, 1', 's_or_b32 s69, s69, s68',
          'v_xor_b32 v15, s69, v15', 'v_lshl_add_u32 v13, v15, 5, v13', 'v_and_b32 v15, 3, v0', 'v_lshl_add_u32 v13, v15, 3, v13',
          'v_add_u32 %s, 16384, v13' % v(vWA)]
    for fb in range(1, 4): L.append('v_xor_b32 %s, %d, %s' % (v(vWA + fb), 32 * fb, v(vWA)))
    for k in range(6): L.append('v_add_u32 %s, 0x10000, %s' % (v(vXB + 6 + k), v(vXB + k)))
    for k in range(4): L.append('v_mov_b32 %s, 0x3f803f80' % v(vONE + k))
    return L

def g1_dma(s):
    slot = (s % 4) * SLOT
    tX, tW = sT[8], sT[9]
    L = [['s_lshl_b32 s%d, s%d, 7' % (tX, sK), 's_add_u32 s%d, s%d, s%d' % (tX, tX, sXB),
          's_mul_i32 s%d, s%d, %d' % (tW, sK, 64 * 3456), 's_add_u32 s%d, s%d, s%d' % (tW, tW, sWB)]]
    for i in range(4):
        L.append(['s_add_u32 m0, s%d, %d' % (sM0, slot + i * 1024),
                  ('buffer_load_dwordx4 %s, %s, s%d offen lds' % (v(vXD + i), srd(SX), tX), 'st%d' % s)])
        L.append(['s_add_u32 m0, s%d, %d' % (sM0, slot + 16384 + i * 1024),
                  ('buffer_load_dwordx4 %s, %s, s%d offen lds' % (v(vWD + i), srd(SW1), tW), 'st%d' % s)])
    L.append(['s_add_u32 s%d, s%d, 1' % (sK, sK), 's_cmp_eq_u32 s%d, 10' % sK, 's_cselect_b32 s%d, 0, s%d' % (sK, sK)])
    return L

def g1_reads(s, ks, F):
    slot = (s % 4) * SLOT
    hi = 6 if slot >= 65536 else 0
    so = slot & 0xffff
    L = []
    for q in range(4):
        L.append('ds_read_b64_tr_b16 %s, %s offset:%d' % (v(F + 4 * q, 2), v(vWA + hi + q), so + 8192 * ks))
        L.append('ds_read_b64_tr_b16 %s, %s offset:%d' % (v(F + 4 * q + 2, 2), v(vWA + hi + q), so + 8192 * ks + 1024))
        L.append('ds_read_b128 %s, %s offset:%d' % (v(F + 16 + 4 * q, 4), v(vXB + hi + ks), so + 2048 * q))
    return L

def g1_mfma(F, first):
    L = []
    order = [(0, 0), (1, 0), (0, 1), (1, 1), (2, 0), (2, 1), (0, 2), (1, 2), (2, 2), (3, 0), (3, 1), (3, 2), (0, 3), (1, 3), (2, 3), (3, 3)]
    for (fb, tb) in order:
        d = v(vACC + 16 * fb + 4 * tb, 4)
        L.append('v_mfma_f32_16x16x32_bf16 %s, %s, %s, %s' % (d, v(F + 4 * fb, 4), v(F + 16 + 4 * tb, 4), '0' if first else d))
    for fb in range(2):
        d = v(vCS + 4 * fb, 4)
        L.insert(4 + 3 * fb, 'v_mfma_f32_16x16x32_bf16 %s, %s, %s, %s' % (d, v(F + 4 * fb, 4), v(vONE, 4), '0' if first else d))
    return L

FAW_LOAD = 'buffer_load_dword v228, v229, %s, 0 offen sc1' % srd(SWS)
def gemm1():
    for s in range(10):
        e.wait_vm(('st%d' % s, 'u') if s == 2 else 'st%d' % s, lg0=True)
        e('s_barrier')
        if s in (1, 5, 9): stamp({1: 2, 5: 3, 9: 4}[s])
        extra = list(g1_reads(s, 0, vFP))
        dma = g1_dma(s + 3) if s + 3 < 10 else []
        if s == 2: fa_publish()
        if s == 7:
            dma = [['v_min_u32 v229, 42, v0', 'v_lshlrev_b32 v229, 2, v229', 's_lshl_b32 s68, s%d, 6' % sMI,
                    'v_add_u32 v13, s68, v229', 'v_add_u32 v229, %d, v229' % (FW - 64), 'v_cmp_gt_u32 vcc, 16, v0',
                    'v_cndmask_b32 v229, v229, v13, vcc', (FAW_LOAD, 'faw')]]
            dma.append(['s_lshl_b32 s68, s%d, 8' % sNI, 's_and_b32 s69, s%d, 1' % sW, 's_lshl_b32 s69, s69, 7', 's_add_u32 s68, s68, s69',
                        's_lshr_b32 s69, s%d, 1' % sW, 's_lshl_b32 s69, s69, 6', 'v_lshrrev_b32 v13, 4, v0', 'v_lshl_add_u32 v13, v13, 3, s68',
                        'v_min_u32 v13, 3352, v13', 'v_xor_b32 v14, s69, v13', 'v_xor_b32 v13, 64, v14'])
            for fb in range(4):
                dma.append(('global_load_dwordx2 %s, %s, %s offset:%d' % (v(vB1R + 2 * fb, 2), 'v14' if fb < 2 else 'v13', sp(P_B1), 32 * (fb & 1)), 'b1'))
        if s == 9:
            poll(228, 1, FAW_LOAD, 'faw')
            e('s_lshl_b32 s68, s%d, 10' % sMI)
            e('s_lshr_b32 s69, s%d, 1' % sW)
            e('s_lshl_b32 s69, s69, 9')
            e('s_add_u32 s68, s68, s69')
            e('s_add_u32 s68, s68, %d' % STATS)
            e('v_and_b32 v13, 15, v0')
            e('v_lshlrev_b32 v13, 3, v13')
            for tb in range(4):
                e('buffer_load_dwordx2 %s, v13, %s, s68 offen offset:%d sc1' % (v(vSTAT + 2 * tb, 2), srd(SWS), 128 * tb), tag='stat')
        if s == 0:
            put(extra); put(dma)
        else:
            m = g1_mfma(vFQ, False)
            put(mix(m, extra, dma))
        put(interleave(g1_mfma(vFP, s == 0), g1_reads(s, 1, vFQ), 0, 1, 1))
    put(g1_mfma(vFQ, False))

def mix(m, reads, dma):
    out = []
    for i, x in enumerate(m):
        out.append(x)
        if i < 6: out += reads[2 * i:2 * i + 2]
        elif i - 6 < len(dma): out.append(dma[i - 6])
    out += dma[len(m) - 6:]
    return out

def gelu(stash):
    vB1, vCO, vK, vTM = 112, 128, 136, 140
    e('v_lshrrev_b32 v13, 4, v0')
    e('v_lshlrev_b32 v13, 4, v13')
    e('s_lshl_b32 s68, s%d, 7' % sW)
    e('s_add_u32 s68, s68, %d' % CSX)
    e('v_add_u32 v14, s68, v13')
    e('s_xor_b32 s68, s%d, 2' % sW)
    e('s_lshl_b32 s68, s68, 7')
    e('s_add_u32 s68, s68, %d' % CSX)
    e('v_add_u32 v15, s68, v13')
    for k in range(8):
        e('v_lshlrev_b32 %s, 16, %s' % (v(vB1 + 2 * k), v(vB1R + k)))
        e('v_and_b32 %s, 0xffff0000, %s' % (v(vB1 + 2 * k + 1), v(vB1R + k)))
    e('s_mov_b32 exec_lo, 0x10001'); e('s_mov_b32 exec_hi, 0x10001')
    e('ds_write_b128 v14, %s' % v(vCS, 4))
    e('ds_write_b128 v14, %s offset:64' % v(vCS + 4, 4))
    e('s_mov_b64 exec, -1')
    import struct
    f2u = lambda f: struct.unpack('<I', struct.pack('<f', f))[0]
    k0 = -2.0 * 0.7978845608028654 * 1.4426950408889634
    e('v_mov_b32 %s, 0x%x' % (v(vK), f2u(k0 * 0.044715)))
    e('v_mov_b32 %s, 0x%x' % (v(vK + 1), f2u(k0)))
    e('s_lshr_b32 s68, s%d, 1' % sW)
    e('s_and_b32 s69, s%d, 1' % sW)
    e('s_lshl_b32 s70, s%d, 1' % sNI)
    e('s_add_u32 s70, s70, s69')
    e('s_lshl_b32 s70, s70, 1')
    e('s_mul_i32 s71, s68, 216')
    e('s_add_u32 s71, s71, s70')
    e('s_add_u32 s72, s71, s68')
    e('s_xor_b32 s73, s72, 1')
    e('s_lshl_b32 s72, s72, 10'); e('s_lshl_b32 s73, s73, 10')
    e('s_cmp_lt_u32 s70, 54')
    e('s_cselect_b32 s72, s72, %d' % OOB); e('s_cselect_b32 s73, s73, %d' % OOB)
    e.barrier()
    e('ds_read_b128 %s, v15' % v(vCO, 4))
    e('ds_read_b128 %s, v15 offset:64' % v(vCO + 4, 4))
    stamp(5)
    n = 0
    for pair in range(2):
        for tb in range(4):
            P, Z, O = vTM, vTM + 8, vTM + 16 + 4 * (n & 1)
            st = vSTAT + 2 * tb
            I = []
            prs = [(fb, h) for fb in (2 * pair, 2 * pair + 1) for h in range(2)]
            for q, (fb, h) in enumerate(prs):
                cs = (vCS if pair == 0 else vCO) + 4 * (fb & 1) + 2 * h
                I.append('v_pk_fma_f32 %s, %s, %s, %s op_sel:[0,1,0] op_sel_hi:[1,1,1] neg_lo:[0,1,0] neg_hi:[0,1,0]' % (v(P + 2 * q, 2), v(cs, 2), v(st, 2), v(vB1 + 4 * fb + 2 * h, 2)))
            for q, (fb, h) in enumerate(prs):
                I.append('v_pk_fma_f32 %s, %s, %s, %s op_sel_hi:[1,0,1]' % (v(P + 2 * q, 2), v(vACC + 16 * fb + 4 * tb + 2 * h, 2), v(st, 2), v(P + 2 * q, 2)))
            for q in range(4): I.append('v_pk_mul_f32 %s, %s, %s' % (v(Z + 2 * q, 2), v(P + 2 * q, 2), v(P + 2 * q, 2)))
            for q in range(4): I.append('v_pk_fma_f32 %s, %s, %s, %s op_sel:[0,0,1] op_sel_hi:[1,0,1]' % (v(Z + 2 * q, 2), v(Z + 2 * q, 2), v(vK, 2), v(vK, 2)))
            for q in range(4): I.append('v_pk_mul_f32 %s, %s, %s' % (v(Z + 2 * q, 2), v(Z + 2 * q, 2), v(P + 2 * q, 2)))
            for q in range(8): I.append('v_exp_f32 %s, %s' % (v(Z + q), v(Z + q)))
            for q in range(4): I.append('v_pk_add_f32 %s, %s, 1.0 op_sel_hi:[1,0]' % (v(Z + 2 * q, 2), v(Z + 2 * q, 2)))
            for q in range(8): I.append('v_rcp_f32 %s, %s' % (v(Z + q), v(Z + q)))
            for q in range(4): I.append('v_pk_mul_f32 %s, %s, %s' % (v(Z + 2 * q, 2), v(Z + 2 * q, 2), v(P + 2 * q, 2)))
            for q in range(4): I.append('v_cvt_pk_bf16_f32 %s, %s, %s' % (v(O + q), v(Z + 2 * q), v(Z + 2 * q + 1)))
            ex = [stash.pop(0) for _ in range(min(3, len(stash)))]
            put(interleave(I, ex, 4, 14, 1))
            e('buffer_store_dwordx4 %s, v1, %s, s%d offen sc1' % (v(O, 4), srd(SH), 72 + pair), tag='h')
            e('s_add_u32 s%d, s%d, 55296' % (72 + pair, 72 + pair))
            n += 1

def cmul(d, x, y):
    return ['v_pk_mul_f32 %s, %s, %s op_sel:[0,0] op_sel_hi:[0,1]' % (v(d, 2), v(x, 2), v(y, 2)),
            'v_pk_fma_f32 %s, %s, %s, %s op_sel:[1,1,0] op_sel_hi:[1,0,1] neg_lo:[1,0,0]' % (v(d, 2), v(x, 2), v(y, 2), v(d, 2))]

def kgen(tab, slot_sgpr, stash, mid=None, post=None):
    C, W1, W2, W4, W8, W16, W256 = 16, 18, 20, 22, 24, 26, 28
    A2, B2, DT, t0, t1, t2 = 30, 31, 32, 33, 34, 35
    vKT = 36
    e('s_lshr_b32 s68, s%d, 1' % sW)
    e('s_mul_i32 s68, s68, %d' % CHP)
    e('s_and_b32 s69, s%d, 1' % sW)
    e('s_lshl_b32 s70, s69, 8')
    e('s_add_u32 s70, s70, s68')
    if tab: e('s_add_u32 s70, s70, %d' % tab)
    e('v_lshl_add_u32 %s, v0, 2, s70' % v(vKT))
    for k in range(6): e('v_lshlrev_b32 %s, 16, %s' % (v(vPAR + k), v(vPAR + k)))
    e('v_mul_f32 %s, 0x%x, %s' % (v(t0), LOG2E, v(vPAR + 4)))
    e('v_mul_f32 %s, 0x%x, %s' % (v(t1), LOG2E, v(vPAR)))
    e('v_exp_f32 %s, %s' % (v(t0), v(t0)))
    e('v_exp_f32 %s, %s' % (v(t1), v(t1)))
    e('v_cvt_pk_bf16_f32 %s, %s, %s' % (v(t0), v(t0), v(t1)))
    e('v_lshlrev_b32 %s, 16, %s' % (v(DT), v(t0)))
    e('v_and_b32 %s, 0xffff0000, %s' % (v(t1), v(t0)))
    e('v_mul_f32 %s, %s, %s' % (v(t1), v(t1), v(DT)))
    e('v_mul_f32 %s, %s, %s' % (v(B2), v(vPAR + 1), v(DT)))
    e('v_mul_f32 %s, 0x%x, %s' % (v(A2), LOG2E ^ 0x80000000, v(t1)))
    e('v_mul_f32 %s, 0x%x, %s' % (v(B2), INV2PI, v(B2)))
    e('v_add_f32 %s, %s, %s' % (v(DT), v(DT), v(DT)))
    e('v_mul_f32 %s, %s, %s' % (v(C), v(vPAR + 2), v(DT)))
    e('v_mul_f32 %s, %s, %s' % (v(C + 1), v(vPAR + 3), v(DT)))
    for (W, tt) in ((W1, None), (W16, 0x41800000), (W256, 0x43800000)):
        if tt is None:
            e('v_exp_f32 %s, %s' % (v(t0), v(A2))); e('v_fract_f32 %s, %s' % (v(t1), v(B2)))
        else:
            e('v_mul_f32 %s, 0x%x, %s' % (v(t0), tt, v(A2))); e('v_mul_f32 %s, 0x%x, %s' % (v(t1), tt, v(B2)))
            e('v_exp_f32 %s, %s' % (v(t0), v(t0))); e('v_fract_f32 %s, %s' % (v(t1), v(t1)))
        e('v_cos_f32 %s, %s' % (v(W), v(t1)))
        e('v_sin_f32 %s, %s' % (v(W + 1), v(t1)))
        neg = ' neg_hi:[1,0]' if W == W16 else ''
        e('v_pk_mul_f32 %s, %s, %s op_sel:[0,1] op_sel_hi:[1,1]%s' % (v(W, 2), v(W, 2), v(t0 - 1, 2), neg))
    ring = [40 + 2 * k for k in range(24)]
    pos = [0]
    def nxt():
        r = ring[pos[0] % len(ring)]; pos[0] += 1; return r
    cv = [90 + k for k in range(8)]
    cpos = [0]
    def wr(row, src):
        c = cv[cpos[0] % 8]; cpos[0] += 1
        return ['v_cvt_pk_bf16_f32 %s, %s, %s' % (v(c), v(src), v(src + 1)), 'ds_write_b32 %s, %s offset:%d' % (v(vKT), v(c), row * 528)]
    S = [100 + 2 * k for k in range(8)]
    chA, chB, chC = [], [], []
    cur = C; chA.append(wr(0, cur))
    ra = [40, 42, 44]
    for r in range(1, 16):
        d = ra[r % 3]; chA.append(cmul(d, cur, W1) + wr(r, d)); cur = d
    chB.append(['v_mov_b32 %s, 0x3f80' % v(98), 'ds_write_b32 %s, %s offset:%d' % (v(vKT), v(98), 41 * 528)])
    cur = W16; chB.append(wr(42, cur))
    rb_ = [46, 48, 50]
    for q in range(2, 16):
        d = rb_[q % 3]; chB.append(cmul(d, cur, W16) + wr(41 + q, d)); cur = d
    chC.append(cmul(W2, W1, W1)); chC.append(cmul(S[0], C, W256) + wr(16, S[0]))
    chC.append(cmul(W4, W2, W2)); chC.append(cmul(S[1], S[0], W256) + wr(24, S[1]))
    chC.append(cmul(W8, W4, W4)); chC.append(cmul(S[2], S[1], W256) + wr(28, S[2]))
    for k in range(3, 8): chC.append(cmul(S[k], S[k - 1], W256) + wr(32 + 2 * (k - 3), S[k]))
    chD = []
    rc = [52, 54, 56]; rd = [58, 60, 62]
    cur = S[0]
    for r in range(1, 8):
        d = rc[r % 3]; chD.append(cmul(d, cur, W2) + wr(16 + r, d)); cur = d
    chE = []
    for f in range(2):
        cur = S[1 + f]
        for r in range(1, 4):
            d = rd[(3 * f + r) % 3]; chE.append(cmul(d, cur, W4) + wr(24 + 4 * f + r, d)); cur = d
    for f in range(4):
        d = 64 + 2 * (f & 1); chE.append(cmul(d, S[3 + f], W8) + wr(33 + 2 * f, d))
    def zip3(*chs):
        out = []
        for k in range(max(len(c) for c in chs)):
            grp = [c[k] for c in chs if k < len(c)]
            for q in range(4):
                for gq in grp:
                    if q < len(gq): out.append(gq[q])
        return out
    I = zip3(chA, chB, chC + []) + zip3(chD, chE)
    ex = [stash.pop(0) for _ in range(min(14, len(stash)))]
    put(interleave(I, ex, 4, 16, 1))
    vKA, vKA2, vC1, vC2, vDS = 36, 37, 38, 39, 35
    e('v_and_b32 v13, 15, v0'); e('v_lshrrev_b32 v14, 4, v0')
    e('v_mul_u32_u24 v15, 528, v13')
    e('v_lshl_add_u32 v15, v14, 4, v15')
    e('s_mul_i32 s70, s69, %d' % (16 * 528))
    e('s_add_u32 s70, s70, s68')
    e('s_add_u32 s68, s68, %d' % (32 * 528 + tab))
    if tab: e('s_add_u32 s70, s70, %d' % tab)
    e('v_add_u32 %s, s68, v15' % v(vKA2))
    e.wait_lg0()
    e('v_add_u32 %s, s70, v15' % v(vKA))
    e('v_lshlrev_b32 v15, 5, v13'); e('v_lshl_add_u32 v30, v14, 3, v15')
    e('v_lshlrev_b32 v15, 4, v13'); e('v_lshl_add_u32 v31, v14, 3, v15'); e('v_add_u32 v31, 512, v31')
    e('v_lshlrev_b32 v15, 3, v13'); e('v_lshl_add_u32 v32, v14, 7, v15'); e('v_add_u32 v32, 512, v32')
    e('v_cmp_gt_u32 vcc, 2, v14')
    e('v_cndmask_b32 v31, v32, v31, vcc')
    e('v_lshlrev_b32 v15, 2, v13'); e('v_lshl_add_u32 v32, v14, 7, v15'); e('v_add_u32 v32, 1024, v32')
    e('v_mov_b32 v33, 1296')
    e('v_cndmask_b32 v32, v33, v32, vcc')
    e('v_cmp_eq_u32 vcc, 32, v0')
    e('v_mov_b32 v33, 1280')
    e('v_cndmask_b32 v32, v32, v33, vcc')
    e('s_cmp_eq_u32 s69, 0')
    e('s_cselect_b64 vcc, -1, 0')
    e('s_lshr_b32 s68, s%d, 1' % sW)
    e('s_mul_i32 s68, s68, 1536')
    e('s_add_u32 s68, s68, s%d' % slot_sgpr)
    e('v_cndmask_b32 v31, v31, v30, vcc')
    e('v_add_u32 %s, s68, v31' % v(vC1))
    e('v_add_u32 %s, s68, v32' % v(vC2))
    e('s_cmp_eq_u32 s69, 0')
    e('s_cselect_b64 vcc, 1, 0')
    e('v_mov_b32 v33, 0')
    e('v_cndmask_b32 %s, v33, %s, vcc' % (v(vDS), v(vPAR + 5)))
    e('v_mov_b32 v34, s68')
    e('ds_write_b32 v34, v33 offset:%d' % (2 * T.ZERO))
    if mid: mid()
    e.barrier()
    FA_, FA2, FB = 40, 72, 104
    R = []
    for ks in range(8):
        R.append('ds_read_b128 %s, %s offset:%d' % (v(FB + 4 * ks, 4), v(vKA2), 9 * 528 + 64 * ks))
        R.append('ds_read_b128 %s, %s offset:%d' % (v(FA_ + 4 * ks, 4), v(vKA), 64 * ks))
        R.append('ds_read_b128 %s, %s offset:%d' % (v(FA2 + 4 * ks, 4), v(vKA2), 64 * ks))
    put(R[:12])
    for ks in range(8):
        e('v_mfma_f32_16x16x32_bf16 v[16:19], %s, %s, %s' % (v(FA_ + 4 * ks, 4), v(FB + 4 * ks, 4), '0' if ks == 0 else 'v[16:19]'))
        if ks < 4: put(R[12 + 3 * ks:14 + 3 * ks])
        e('v_mfma_f32_16x16x32_bf16 v[20:23], %s, %s, %s' % (v(FA2 + 4 * ks, 4), v(FB + 4 * ks, 4), '0' if ks == 0 else 'v[20:23]'))
        if ks < 4: put(R[14 + 3 * ks])
    if post: post()
    e('v_add_f32 v16, v16, %s' % v(vDS))
    e('v_cvt_pk_bf16_f32 v24, v16, v17'); e('v_cvt_pk_bf16_f32 v25, v18, v19')
    e('v_cvt_pk_bf16_f32 v26, v20, v21'); e('v_cvt_pk_bf16_f32 v27, v22, v23')
    e('ds_write_b64 %s, v[24:25]' % v(vC1))
    e('ds_write_b32 %s, v26' % v(vC2))
    e('ds_write_b32 %s, v27 offset:64' % v(vC2))

FAALL_LOAD = 'buffer_load_dwordx4 v[180:183], v1, %s, 0 offen sc1' % srd(SWS)
def u_loads():
    e('v_lshrrev_b32 v13, 1, v0'); e('v_mul_u32_u24 v13, 10240, v13')
    e('v_and_b32 v14, 1, v0'); e('v_lshl_add_u32 v13, v14, 4, v13')
    e('s_mul_i32 s68, s%d, %d' % (sW, 64 * 10240))
    e('s_lshl_b32 s69, s%d, 5' % sPAIR)
    e('s_add_u32 s68, s68, s69'); e('s_add_u32 s68, s68, %d' % UOFF)
    e('s_add_u32 s69, s68, %d' % (32 * 10240))
    e('buffer_load_dwordx4 v[184:187], v13, %s, s68 offen sc1' % srd(SWS), tag='ul')
    e('buffer_load_dwordx4 v[188:191], v13, %s, s69 offen sc1' % srd(SWS), tag='ul')

def conv(slot_sgpr, stash):
    e('v_and_b32 v14, 1, v0'); e('v_mul_u32_u24 v14, 4640, v14')
    e('v_lshrrev_b32 v13, 1, v0'); e('v_lshl_add_u32 v13, v13, 4, v14')
    e('s_lshl_b32 s68, s%d, 10' % sW); e('s_add_u32 s68, s68, %d' % (UARR + 544))
    e('v_add_u32 v13, s68, v13')
    e('v_mov_b32 v16, 0'); e('v_mov_b32 v17, 0'); e('v_mov_b32 v18, 0'); e('v_mov_b32 v19, 0')
    e('v_min_u32 v15, 33, v0'); e('s_lshr_b32 s70, s%d, 1' % sW); e('s_mul_i32 s68, s70, 4640'); e('s_add_u32 s68, s68, %d' % UARR)
    e('v_lshl_add_u32 v15, v15, 4, s68')
    e('ds_write_b128 v15, v[16:19]')
    e('ds_write_b128 v13, v[184:187]')
    e('ds_write_b128 v13, v[188:191] offset:512')
    e('s_mul_i32 s68, s70, 1536'); e('s_add_u32 s68, s68, s%d' % slot_sgpr)
    for k in range(9):
        e('v_add_u32_sdwa %s, s68, %s dst_sel:DWORD dst_unused:UNUSED_PAD src0_sel:DWORD src1_sel:WORD_%d' % (v(20 + k), v(vGI + k // 2), k & 1))
    e.barrier()
    for k in range(9): e('ds_read_u16 %s, %s' % (v(30 + k), v(20 + k)))
    e('s_and_b32 s71, s%d, 1' % sW)
    e('s_mul_i32 s68, s70, 4224'); e('s_add_u32 s68, s68, %d' % RARR)
    e('s_lshl_b32 s69, s71, 10'); e('s_add_u32 s69, s69, s68')
    e('v_add_u32 v13, s69, v1')
    for k in range(4): e('v_lshl_or_b32 %s, %s, 16, %s' % (v(40 + k), v(31 + 2 * k), v(30 + 2 * k)))
    for k in range(4): e('v_lshl_or_b32 %s, %s, 16, %s' % (v(44 + k), v(32 + 2 * k), v(31 + 2 * k)))
    e('ds_write_b128 v13, v[40:43]')
    e('ds_write_b128 v13, v[44:47] offset:2112')
    vR8, vR8h, vR4, vR4h, vUB = 16, 17, 18, 19, 20
    e('v_and_b32 v13, 15, v0'); e('v_lshrrev_b32 v14, 4, v0')
    e('v_sub_u32 v15, 15, v13'); e('v_and_b32 v21, 1, v15'); e('v_mul_u32_u24 v21, 2110, v21')
    e('v_lshl_add_u32 v15, v15, 1, v21'); e('v_add_u32 v15, s68, v15')
    e('v_lshl_add_u32 %s, v14, 4, v15' % v(vR8)); e('v_add_u32 %s, 1024, %s' % (v(vR8h), v(vR8)))
    e('v_lshl_add_u32 %s, v14, 3, v15' % v(vR4)); e('v_add_u32 %s, 1024, %s' % (v(vR4), v(vR4)))
    e('s_mul_i32 s68, s70, 4640'); e('s_add_u32 s68, s68, %d' % (UARR + 544 - 32 - 512))
    e('v_lshlrev_b32 v13, 5, v13'); e('v_lshl_add_u32 v13, v14, 4, v13'); e('v_add_u32 %s, s68, v13' % v(vUB))
    e.barrier()
    stamp(8)
    def rd8(dst, P):
        b, o = (vR8, P // 2) if P // 2 + 3 <= 255 else (vR8h, P // 2 - 256)
        return ['ds_read2_b32 %s, %s offset0:%d offset1:%d' % (v(dst, 2), v(b), o, o + 1),
                'ds_read2_b32 %s, %s offset0:%d offset1:%d' % (v(dst + 2, 2), v(b), o + 2, o + 3)]
    def rd4(dst, P):
        o = P // 2 - 256
        return ['ds_read2_b32 %s, %s offset0:%d offset1:%d' % (v(dst, 2), v(vR4), o, o + 1)]
    def ub(dst, off): return 'ds_read_b128 %s, %s offset:%d' % (v(dst, 4), v(vUB), 2 * (off + 16) + 512)
    vF, vO = 24, 40
    roleB, join = lab('roleB'), lab('convjoin')
    nst = min(len(stash), 24)
    st = [stash.pop(0) for _ in range(nst)]
    e('s_cmp_eq_u32 s71, 1')
    e('s_cbranch_scc1 %s' % roleB)
    snap = e.snapshot()
    acc = lambda b: (vF + 4 * b) if b < 4 else (vO + 4 * (b - 4))
    AF = 56
    RB = 108
    seen = set()
    def mm(b, A, B):
        d = v(acc(b), 4); c = d if b in seen else '0'; seen.add(b)
        return 'v_mfma_f32_16x16x32_bf16 %s, %s, %s, %s' % (d, v(A, 4), v(B, 4), c)
    ws = list(range(-7, 57))
    pre = []
    for k in range(6): pre.append(ub(RB + 4 * (k % 8), 32 * ws[k] - 16))
    aord = [7, 6, 5, 4, 12, 3, 11, 2, 10, 1, 9, 0, 8]
    put(rd8(AF + 4 * 7, 512 - 32 * 7)); put(pre[0]); put(rd8(AF + 4 * 6, 512 - 32 * 6)); put(pre[1:3])
    pend = [x for s in aord[2:] for x in rd8(AF + 4 * s, 512 - 32 * s)]
    put(pend[:6]); pend = pend[6:]; put(pre[3:])
    M = []
    for k, w in enumerate(ws):
        grp = [mm(b, AF + 4 * (8 * b - w), RB + 4 * (k % 8)) for b in range(8) if 0 <= 8 * b - w <= 12]
        fill = []
        if k + 6 < len(ws): fill.append(ub(RB + 4 * ((k + 6) % 8), 32 * ws[k + 6] - 16))
        M.append(grp[0]); M.append(fill + pend[:3]); pend = pend[3:]
        M += grp[1:]
    put(interleave(M, list(st), 6, 6, 1))
    endA = [(x['tag'], x['opt']) for x in e.vm]
    conv_xwrite(vO, 0)
    e('s_branch %s' % join)
    e.restore(snap)
    e.raw(roleB + ':')
    acc = lambda b: (vO + 4 * b) if b < 4 else (vF + 4 * (b - 4))
    seen = set()
    AF, CR, KB, RB, TT, PP = 56, 72, 76, 116, 148, 172
    b5, b3a, b3b, b9, b7 = [vBAND + 4 * k for k in range(5)]
    ring = [0]
    def nb():
        r = RB + 4 * (ring[0] % 8); ring[0] += 1; return r
    def box(t, A, B): return 'v_mfma_f32_16x16x32_bf16 %s, %s, %s, 0' % (v(TT + 4 * t, 4), v(A, 4), v(B, 4))
    def cvt(t): return ['v_cvt_pk_bf16_f32 %s, %s, %s' % (v(PP + 2 * t + q), v(TT + 4 * t + 2 * q), v(TT + 4 * t + 2 * q + 1)) for q in range(2)]
    steps = []
    for n in range(6):
        U16, U24 = ('u', 256 * n - 16), ('u', 256 * n - 24)
        s1 = [('box', 0, U24, b5), ('box', 1, U16, b3a), ('box', 2, U16, b5), ('box', 3, U16, b3b)]
        if n < 4: s1 += [('box', 4, U24, b9), ('box', 5, U16, b7)]
        s1 += [('mm', n + 2, AF + 12, U16)]
        for s in (13, 14, 15): s1.append(('mm', n + 1, AF + 4 * (s - 13), ('u', 32 * (8 * (n + 1) - s) - 16)))
        if n < 5: s1.append(('mm', n + 3, CR, ('u', 256 * (n - 1) - 8)))
        if n == 5:
            for s in (13, 14, 15): s1.append(('mm', 7, AF + 4 * (s - 13), ('u', 32 * (56 - s) - 16)))
        s1.append(('cvt', 6 if n < 4 else 4))
        for D in range(4):
            if D < 3 and n + 2 + D < 8: s1 += [('mr', n + 2 + D, PP, KB + 4 * D), ('mr', n + 2 + D, PP + 4, KB + 12 + 4 * D)]
            if n < 4 and n + 4 + D < 8: s1.append(('mr', n + 4 + D, PP + 8, KB + 24 + 4 * D))
        steps += s1
    uses = []
    for x in steps:
        for y in x:
            if isinstance(y, tuple) and y not in uses: uses.append(y)
    reg = {u: RB + 4 * (k % 8) for k, u in enumerate(uses)}
    first = {u: min(k for k, x in enumerate(steps) if u in x) for u in uses}
    last = {u: max(k for k, x in enumerate(steps) if u in x) for u in uses}
    for k in range(8, len(uses)): assert last[uses[k - 8]] < first[uses[k]]
    put([ub(reg[u], u[1]) for u in uses[:2]])
    for k in range(4): e('v_mov_b32 %s, 0' % v(vO + k))
    put(rd8(AF + 12, 0))
    pend = [x for s in (13, 14, 15) for x in rd8(AF + 4 * (s - 13), 512 - 32 * s)] + rd8(CR, T.BC)
    for D in range(4):
        if D < 3: pend += rd4(KB + 4 * D, T.B0 + 16 * (2 - D)) + rd4(KB + 4 * D + 2, T.B1 + 16 * (2 - D)) + rd4(KB + 12 + 4 * D, T.B2 + 16 * (2 - D)) + rd4(KB + 12 + 4 * D + 2, T.B3 + 16 * (2 - D))
        pend += rd4(KB + 24 + 4 * D, T.B4 + 16 * (3 - D)) + rd4(KB + 24 + 4 * D + 2, T.B5 + 16 * (3 - D))
    put([ub(reg[u], u[1]) for u in uses[2:6]])
    put(pend[:6]); pend = pend[6:]
    nxt = 6
    M = []
    for k, x in enumerate(steps):
        if x[0] == 'box': M.append(box(x[1], reg[x[2]], x[3]))
        elif x[0] == 'mm': M.append(mm(x[1], x[2], reg[x[3]]))
        elif x[0] == 'mr': M.append(mm(x[1], x[2], x[3]))
        else:
            M.append([c for t in range(x[1]) for c in cvt(t)]); continue
        fill = []
        if pend: fill += pend[:2]; pend = pend[2:]
        if nxt < len(uses) and (nxt < 8 or last[uses[nxt - 8]] <= k): fill.append(ub(reg[uses[nxt]], uses[nxt][1])); nxt += 1
        if fill: M.append(fill)
    assert nxt == len(uses) and not pend
    put(interleave(M, list(st), 6, 6, 1))
    endB = [(x['tag'], x['opt']) for x in e.vm]
    assert endA == endB, (endA, endB)
    conv_xwrite(vO, 1)
    e.raw(join + ':')
    e.fence()
    e.barrier()
    stamp(9)
    for k in range(4): e('ds_read_b128 %s, v21 offset:%d' % (v(vO + 4 * k, 4), 1024 * k))
    e('v_lshrrev_b32 v14, 4, v0'); e('v_and_b32 v13, 1, v14'); e('v_lshlrev_b32 v13, 9, v13')
    e('v_lshrrev_b32 v14, 1, v14'); e('v_lshl_add_u32 v13, v14, 4, v13')
    e('v_and_b32 v14, 15, v0'); e('v_lshl_add_u32 v13, v14, 5, v13')
    e('s_lshl_b32 s68, s%d, 1' % sPAIR); e('s_add_u32 s68, s68, s70')
    e('s_mul_i32 s72, s71, 640'); e('s_add_u32 s72, s72, s68'); e('s_lshl_b32 s72, s72, 2'); e('s_add_u32 s72, s72, %d' % FY)
    e('s_lshl_b32 s68, s68, 12'); e('s_lshl_b32 s69, s71, 11'); e('s_add_u32 s68, s68, s69'); e('s_add_u32 s68, s68, %d' % YOFF)
    for k in range(8): e('v_pk_add_f32 %s, %s, %s' % (v(vF + 2 * k, 2), v(vF + 2 * k, 2), v(vO + 2 * k, 2)))
    for p in range(2):
        X = 56 + 4 * p
        e('v_cvt_pk_bf16_f32 %s, %s, %s' % (v(X), v(vF + 8 * p), v(vF + 8 * p + 1)))
        e('v_cvt_pk_bf16_f32 %s, %s, %s' % (v(X + 1), v(vF + 8 * p + 2), v(vF + 8 * p + 3)))
        e('v_cvt_pk_bf16_f32 %s, %s, %s' % (v(X + 2), v(vF + 8 * p + 4), v(vF + 8 * p + 5)))
        e('v_cvt_pk_bf16_f32 %s, %s, %s' % (v(X + 3), v(vF + 8 * p + 6), v(vF + 8 * p + 7)))
        e('v_permlane16_swap_b32 %s, %s' % (v(X), v(X + 2)))
        e('v_permlane16_swap_b32 %s, %s' % (v(X + 1), v(X + 3)))
        e('buffer_store_dwordx4 %s, v13, %s, s68 offen offset:%d sc1' % (v(X, 4), srd(SWS), 1024 * p), tag='y')

def conv_xwrite(vO, role):
    e('s_lshl_b32 s68, s70, 13'); e('s_add_u32 s68, s68, %d' % XCH)
    e('v_add_u32 v22, s68, v1')
    e('v_add_u32 v21, %d, v22' % (4096 * (1 - role)))
    for k in range(4): e('ds_write_b128 v22, %s offset:%d' % (v(vO + 4 * k, 4), 4096 * role + 1024 * k))
    e.wait_lg0()

def gemm2():
    vA2, vH, vHO, vY = 16, 96, 196, 200
    RING = 6
    acc = lambda db, tb: vA2 + 16 * db + 4 * tb
    e('s_mul_i32 s68, s%d, %d' % (sM64, 4 * 55296)); e('s_add_u32 s68, s68, %d' % HOFF)
    e('s_add_u32 s%d, s%d, s68' % (SH, P_WS)); e('s_addc_u32 s%d, s%d, 0' % (SH + 1, P_WS + 1))
    e('s_mov_b32 s%d, %d' % (SH + 2, 4 * 55296))
    e('v_min_u32 v191, 27, v0'); e('v_lshlrev_b32 v191, 2, v191')
    e('s_lshl_b32 s73, s%d, 7' % sM64); e('s_add_u32 s73, s73, %d' % FH)
    ld = 'buffer_load_dword v190, v191, %s, s73 offen sc1' % srd(SWS)
    e(ld, tag='fh')
    for tb in range(4): e('v_add_u32 %s, %d, v1' % (v(vHO + tb), tb * 55296))
    e('s_waitcnt vmcnt(0)')
    flag_store(72)
    poll(190, 1, ld, 'fh')
    stamp(10)
    def hl(j): return [('buffer_load_dwordx4 %s, %s, %s, s%d offen sc1' % (v(vH + 16 * (j % RING) + 4 * tb, 4), v(vHO + tb), srd(SH), sKS + j), 'h%d' % j) for tb in range(4)]
    for j in range(RING - 1): put(hl(j))
    e('v_min_u32 v13, 39, v0'); e('v_lshlrev_b32 v222, 3, v13')
    e('s_lshr_b32 s68, s%d, 2' % sXCD); e('s_mul_i32 s68, s68, 2560'); e('s_mul_i32 s69, s%d, 320' % sN80)
    e('s_add_u32 s73, s68, s69'); e('s_add_u32 s73, s73, %d' % FY)
    fy = 'buffer_load_dwordx2 v[224:225], v222, %s, s73 offen sc1' % srd(SWS)
    e('v_and_b32 v13, 15, v0'); e('v_lshlrev_b32 v13, 12, v13'); e('v_lshrrev_b32 v14, 4, v0'); e('v_lshl_add_u32 v223, v14, 4, v13')
    e('s_mul_i32 s68, s%d, %d' % (sN80, 80 * 4096)); e('s_lshl_b32 s69, s%d, 7' % sM64); e('s_add_u32 s68, s68, s69'); e('s_add_u32 s68, s68, %d' % YOFF)
    e('s_lshl_b32 s69, s%d, 16' % sW); e('s_add_u32 s74, s68, s69')
    e('s_lshr_b32 s69, s%d, 1' % sW); e('s_lshl_b32 s69, s69, 6'); e('s_add_u32 s75, s68, s69'); e('s_add_u32 s75, s75, %d' % (64 * 4096))
    yl = ['buffer_load_dwordx4 %s, v223, %s, s74 offen sc1' % (v(vY, 4), srd(SWS)),
          'buffer_load_dwordx4 %s, v223, %s, s74 offen offset:64 sc1' % (v(vY + 4, 4), srd(SWS)),
          'buffer_load_dwordx4 %s, v223, %s, s75 offen sc1' % (v(vY + 8, 4), srd(SWS))]
    vGO, vLO, vBO = 226, 192, 229
    fin = []
    for i in range(3):
        fin += ['v_add_u32 v13, %d, v0' % (64 * i), 'v_mul_u32_u24 v14, 6554, v13', 'v_lshrrev_b32 v14, 16, v14',
                'v_mul_u32_u24 v15, 10, v14', 'v_sub_u32 v15, v13, v15',
                'v_mul_u32_u24 v13, 1280, v14', 'v_lshl_add_u32 %s, v15, 4, v13' % v(vGO + i),
                'v_mul_u32_u24 v13, 336, v14', 'v_lshl_add_u32 %s, v15, 5, v13' % v(vLO + i)]
    put(fin)
    e('s_mul_i32 s76, s%d, %d' % (sW, 16 * 336))
    for i in range(3): e('v_add_u32 %s, s76, %s' % (v(vLO + i), v(vLO + i)))
    e('s_lshl_b32 s76, s%d, 2' % sM64); e('s_add_u32 s76, s76, s%d' % sW); e('s_mul_i32 s76, s76, %d' % (16 * 1280))
    e('s_mul_i32 s77, s%d, 160' % sN80); e('s_add_u32 s76, s76, s77')
    e('v_and_b32 v13, 15, v0'); e('v_mul_u32_u24 v13, 336, v13'); e('v_lshrrev_b32 v14, 4, v0'); e('v_lshl_add_u32 v13, v14, 4, v13')
    e('s_mul_i32 s68, s%d, 21504' % sW); e('v_add_u32 v195, s68, v13')
    def mf(j, db, tb):
        d = v(acc(db, tb), 4)
        return 'v_mfma_f32_16x16x32_bf16 %s, %s, %s, %s' % (d, stash_reg(j, db), v(vH + 16 * (j % RING) + 4 * tb, 4), '0' if j == 0 else d)
    NT = 3
    for j in range(14 - NT):
        M = [mf(j, db, tb) for tb in range(4) for db in range(5)]
        ex = []
        if j + RING - 1 < 14: ex = hl(j + RING - 1)
        if j == 3: ex = ex + [(fy, 'fy')]
        if j == 9:
            xr = vH + 16 * ((j - 1) % RING)
            ex = [('buffer_load_dwordx4 %s, %s, %s, s76 offen' % (v(xr + 4 * i, 4), v(vGO + i), srd(SX)), 'fx') for i in range(3)]
        if j == 10:
            br = vH + 16 * ((j - 1) % RING)
            ex = []
            for i in range(3):
                ex.append(['v_add_u32 v13, %d, v0' % (64 * i), 'v_mul_u32_u24 v14, 6554, v13', 'v_lshrrev_b32 v14, 16, v14', 'v_mul_u32_u24 v14, 10, v14',
                           'v_sub_u32 v13, v13, v14', 'v_lshl_add_u32 v13, v13, 4, s77', ('global_load_dwordx4 %s, v13, %s' % (v(br + 4 * i, 4), sp(P_B2)), 'fb')])
        if j == 6:
            e('v_and_b32 v224, v224, v225')
            e('v_cmp_ne_u32 s[78:79], 1, v224')
            ex = ex + [(y, 'yl') for y in yl]
        put(interleave(M[:1], [], 0) + interleave(M[1:], ex, 0, 4, 1))
    stamp(11)
    ok = lab('y_ok')
    e('s_cmp_eq_u64 s[78:79], 0')
    e('s_cbranch_scc1 %s' % ok)
    snap = e.snapshot()
    e.raw('    v_mov_b32 v224, 0')
    poll(224, 2, fy, 'fy')
    for y in yl: e.raw('    ' + y)
    e.raw('    s_waitcnt vmcnt(0)')
    e.restore(snap)
    e.raw(ok + ':')
    e.wait_vm('yl')
    labs = [lab('yv') for _ in range(5)]
    snap = e.snapshot()
    for w in range(4):
        e.restore(snap)
        e.raw(labs[w] + ':')
        if w < 3:
            e('s_cmp_lg_u32 s%d, %d' % (sW, w)); e('s_cbranch_scc1 %s' % labs[w + 1])
        for tb in range(4):
            d = v(acc(w, tb), 4)
            e('v_mfma_f32_16x16x32_bf16 %s, %s, %s, %s' % (d, v(vY + 4 * (tb >> 1), 4), v(vSEL + 4 * (tb & 1), 4), d))
        d = v(acc(4, w), 4)
        e('v_mfma_f32_16x16x32_bf16 %s, %s, %s, %s' % (d, v(vY + 8, 4), v(vSEL + 4 * (w & 1), 4), d))
        if w < 3: e('s_branch %s' % labs[4])
    e.raw(labs[4] + ':')
    e('s_barrier')
    prev = []
    for tb in range(4):
        M = [mf(j, db, tb) for j in range(14 - NT, 14) for db in range(5)]
        put(interleave(M, prev, 2, 2, 1))
        prev = ['ds_write_b128 v195, %s offset:%d' % (v(acc(db, tb), 4), RED + tb * 5376 + db * 64) for db in range(5)]
    xr = vH + 16 * (8 % RING); br = vH + 16 * (9 % RING)
    XF = vH + 16 * (10 % RING)
    put(prev)
    XF = 16
    e.wait_lg0()
    for i in range(3):
        for k in range(4):
            e('v_lshlrev_b32 v%d, 16, %s' % (XF + 8 * i + 2 * k, v(xr + 4 * i + k)))
            e('v_and_b32 v%d, 0xffff0000, %s' % (XF + 8 * i + 2 * k + 1, v(xr + 4 * i + k)))
            e('v_lshlrev_b32 v40, 16, %s' % v(br + 4 * i + k))
            e('v_and_b32 v41, 0xffff0000, %s' % v(br + 4 * i + k))
            e('v_pk_add_f32 %s, %s, v[40:41]' % (v(XF + 8 * i + 2 * k, 2), v(XF + 8 * i + 2 * k, 2)))
    e('s_barrier')
    stamp(12)
    PR = 96
    for i in range(3):
        for src in range(4):
            for h in range(2):
                off = RED + src * 21504 + 16 * h
                e('ds_read_b128 %s, %s offset:%d' % (v(PR + 32 * i + 8 * src + 4 * h, 4), v(vLO + i), off))
    for i in range(3):
        for src in range(4):
            for k in range(4):
                e('v_pk_add_f32 %s, %s, %s' % (v(XF + 8 * i + 2 * k, 2), v(XF + 8 * i + 2 * k, 2), v(PR + 32 * i + 8 * src + 2 * k, 2)))
        for k in range(4): e('v_cvt_pk_bf16_f32 %s, %s, %s' % (v(44 + 4 * i + k), v(XF + 8 * i + 2 * k), v(XF + 8 * i + 2 * k + 1)))
        if i == 2: e('s_mov_b32 exec_hi, 0')
        e('buffer_store_dwordx4 %s, %s, %s, s76 offen' % (v(44 + 4 * i, 4), v(vGO + i), srd(SO)), tag='out')
    e('s_mov_b32 exec_hi, -1')
    if OPT['stamps']:
        stamp(13)
        e('s_lshl_b32 s68, s2, 2'); e('s_add_u32 s68, s68, s%d' % sW); e('s_lshl_b32 s68, s68, 8'); e('s_add_u32 s68, s68, %d' % STAMP)
        e('v_lshlrev_b32 v13, 2, v0')
        e('buffer_store_dword %s, v13, %s, s68 offen' % (v(vSTAMP), srd(SWS)))

def full_path():
    e('s_add_u32 s%d, s%d, s%d' % (sPAIR, sPAIR, sJ))
    put(g1_addr())
    put(g1_dma(0))
    put(param_loads(True))
    put(g1_read_addr())
    put(consts())
    d1 = g1_dma(1)
    layernorm(d1[:5], d1[5:])
    ready_issue()
    put(g1_dma(2))
    stamp(1)
    gemm1()
    stash = stash_loads()
    gelu(stash)
    stamp(6)
    e(FAALL_LOAD, tag='faall')
    e('s_mov_b32 s%d, %d' % (sIT, KC))
    def mid():
        e.wait_vm('h')
        e('s_lshl_b32 s72, s%d, 1' % sMI); e('s_lshr_b32 s73, s%d, 1' % sW); e('s_add_u32 s72, s72, s73'); e('s_lshl_b32 s72, s72, 5')
        e('s_lshl_b32 s73, s%d, 1' % sNI); e('s_add_u32 s72, s72, s73'); e('s_and_b32 s73, s%d, 1' % sW); e('s_add_u32 s72, s72, s73')
        e('s_lshl_b32 s72, s72, 2'); e('s_add_u32 s72, s72, %d' % FH)
        flag_store(72)
        poll(180, 4, FAALL_LOAD, 'faall')
        u_loads()
        stamp(7)
    kgen(KTAB, sIT, stash, mid=mid)
    conv(sIT, stash)
    put(stash)
    e('s_branch L_gemm2')

def spare_path():
    e.raw('L_spare:')
    e('s_sub_u32 s68, s%d, 28' % sJ); e('s_mul_i32 s69, s68, 3'); e('s_add_u32 s%d, s%d, s69' % (sPAIR, sPAIR)); e('s_add_u32 s%d, s%d, 28' % (sPAIR, sPAIR))
    nc = lab('noclear')
    e('s_cmp_lg_u32 s2, 248'); e('s_cbranch_scc1 %s' % nc)
    r = lambda s: e.raw('    ' + s)
    for k in range(4): r('v_mov_b32 v%d, 0' % (16 + k))
    r('s_mul_i32 s70, s%d, 3072' % sW)
    for k in range(3): r('buffer_store_dwordx4 v[16:19], v1, %s, s70 offen offset:%d sc1' % (srd(SWS), 1024 * k))
    r('s_waitcnt vmcnt(0)'); r('s_barrier'); r('v_mov_b32 v17, 1'); r('s_mov_b64 exec, 1')
    r('global_store_dword v16, v17, %s sc1' % sp(P_DBG)); r('s_mov_b64 exec, -1')
    e.raw(nc + ':')
    e('s_mul_i32 s69, s%d, 3' % sXCD); e('s_add_u32 s69, s69, s68')
    e('s_add_u32 s70, s%d, 19' % sXCD); e('s_cmp_ge_u32 s%d, 5' % sXCD); e('s_cselect_b32 s70, s70, 31')
    e('s_cmp_eq_u32 s68, 3'); e('s_cselect_b32 s%d, s70, s69' % sNI)
    e('s_mov_b32 s%d, s%d' % (SW1, P_W2)); e('s_mov_b32 s%d, s%d' % (SW1 + 1, P_W2 + 1))
    PACK0 = 0
    e('v_lshrrev_b32 v14, 4, v0'); e('v_mul_u32_u24 v13, 1280, v14'); e('v_bfe_u32 v15, v0, 1, 3'); e('v_xor_b32 v15, v15, v14')
    e('v_lshl_add_u32 v16, v15, 5, v13'); e('v_xor_b32 v15, 4, v15'); e('v_lshl_add_u32 v17, v15, 5, v13')
    e('v_and_b32 v15, 1, v0'); e('v_lshl_add_u32 v16, v15, 4, v16'); e('v_lshl_add_u32 v17, v15, 4, v17')
    e('s_lshl_b32 s%d, s%d, 2' % (sXB, sNI)); e('s_add_u32 s%d, s%d, s%d' % (sXB, sXB, sW)); e('s_mul_i32 s%d, s%d, %d' % (sXB, sXB, 16 * 1280))
    e('s_lshr_b32 s68, s%d, 1' % sW); e('s_mul_i32 s68, s68, 40960'); e('s_and_b32 s69, s%d, 1' % sW); e('s_lshl_b32 s69, s69, 12')
    e('s_add_u32 s%d, s68, s69' % sM0)
    D = []
    for i in range(4):
        for pc in range(5):
            g = ['s_add_u32 m0, s%d, %d' % (sM0, PACK0 + pc * (8192 - 256) + i * 1024),
                 ('buffer_load_dwordx4 %s, %s, s%d offen offset:%d lds' % (v(16 + (i & 1)), srd(SW1), sXB, 256 * pc), 'pk')]
            if pc == 4: g.append('s_add_u32 s%d, s%d, %d' % (sXB, sXB, 4 * 1280))
            D.append(g)
    put(D[:8])
    put(param_loads(True))
    put(consts())
    layernorm(D[8:12], D[12:16])
    ready_issue()
    put(D[16:])
    stamp(1)
    e.wait_vm(('pk', 'u'), lg0=True)
    e('s_barrier')
    fa_publish()
    e('v_bfe_u32 v13, v0, 2, 2'); e('v_lshrrev_b32 v14, 4, v0'); e('v_lshl_add_u32 v13, v14, 2, v13')
    e('v_and_b32 v15, 7, v13'); e('s_and_b32 s69, s%d, 1' % sW); e('v_xor_b32 v15, s69, v15')
    e('v_lshlrev_b32 v13, 8, v13'); e('v_lshl_add_u32 v13, v15, 5, v13'); e('v_and_b32 v15, 3, v0'); e('v_lshl_add_u32 v13, v15, 3, v13')
    e('s_lshr_b32 s68, s%d, 1' % sW); e('s_mul_i32 s70, s68, 40960'); e('v_add_u32 v16, s70, v13')
    for k in range(1, 4): e('v_xor_b32 v%d, %d, v16' % (16 + k, 64 * k))
    e('s_lshl_b32 s70, s%d, 1' % sNI); e('s_add_u32 s70, s70, s68'); e('s_mul_i32 s70, s70, 5120'); e('s_add_u32 s70, s70, %d' % W2P)
    e('s_cmp_lt_u32 s%d, 27' % sNI); e('s_cselect_b32 s70, s70, 0x40000000')
    for i in range(20):
        R = 24 + 4 * i
        e('ds_read_b64_tr_b16 %s, %s offset:%d' % (v(R, 2), v(16 + (i & 3)), PACK0 + (i >> 2) * 8192))
        e('ds_read_b64_tr_b16 %s, %s offset:%d' % (v(R + 2, 2), v(16 + (i & 3)), PACK0 + (i >> 2) * 8192 + 4096))
    for i in range(20):
        o = [((2 * i + b) // 5) * 54 * 5120 + ((2 * i + b) % 5) * 1024 for b in range(2)]
        e('s_mul_i32 s71, s69, %d' % (o[1] - o[0])); e('s_add_u32 s71, s71, %d' % o[0]); e('s_add_u32 s71, s71, s70')
        e('buffer_store_dwordx4 %s, v1, %s, s71 offen sc1' % (v(24 + 4 * i, 4), srd(SWS)), tag='pks')
    e('s_waitcnt vmcnt(0)')
    e.barrier()
    stamp(2)
    e('s_lshl_b32 s72, s%d, 2' % sNI); e('s_add_u32 s72, s72, %d' % FW)
    e('s_cmp_eq_u32 s%d, 0' % sW); e('s_cselect_b32 s72, s72, 0x40000000')
    flag_store(72)
    e('s_mov_b32 s%d, %d' % (sIT, KC))
    lp = lab('kloop')
    e('s_waitcnt vmcnt(0) lgkmcnt(0)')
    e.fence()
    e.raw(lp + ':')
    def post():
        e('s_add_u32 s%d, s%d, 1' % (sPAIR, sPAIR))
        e('s_min_u32 s%d, s%d, 319' % (sT[10], sPAIR))
        save = param_loads(False)
        put([x.replace('s%d, 1' % sPAIR, 's%d, 1' % sT[10]) if isinstance(x, str) and x.startswith('s_lshl_b32 s68, s%d' % sPAIR) else x for x in save])
    kgen(KTAB_SP, sIT, [], post=post)
    e('s_add_u32 s%d, s%d, 3072' % (sIT, sIT))
    e('s_waitcnt vmcnt(0) lgkmcnt(0)')
    e('s_barrier')
    e('s_cmp_lt_u32 s%d, %d' % (sIT, KC + 3 * 3072))
    e.fence()
    e('s_cbranch_scc1 %s' % lp)
    stamp(6)
    e('s_sub_u32 s%d, s%d, 3' % (sPAIR, sPAIR))
    e('s_mov_b32 s%d, %d' % (sIT, KC))
    e(FAALL_LOAD, tag='faall')
    poll(180, 4, FAALL_LOAD, 'faall')
    e('v_min_u32 v229, 26, v0'); e('v_lshlrev_b32 v229, 2, v229'); e('v_add_u32 v229, %d, v229' % FW)
    e(FAW_LOAD, tag='faw')
    poll(228, 1, FAW_LOAD, 'fw')
    stamp(7)
    lp = lab('cloop')
    e('s_waitcnt vmcnt(0) lgkmcnt(0)')
    e.fence()
    e.raw(lp + ':')
    u_loads()
    conv(sIT, [])
    last = lab('clast')
    e('s_add_u32 s%d, s%d, 3072' % (sIT, sIT))
    e('s_add_u32 s%d, s%d, 1' % (sPAIR, sPAIR))
    e('s_cmp_ge_u32 s%d, %d' % (sIT, KC + 3 * 3072))
    e('s_cbranch_scc1 %s' % last)
    snap = e.snapshot()
    e('s_waitcnt vmcnt(0)')
    flag_store(72)
    e.barrier()
    e('s_waitcnt vmcnt(0)')
    e.fence()
    e('s_branch %s' % lp)
    e.restore(snap)
    e.raw(last + ':')
    put(stash_loads())

def main():
    prologue()
    e('s_cmp_ge_u32 s%d, 28' % sJ)
    e('s_cbranch_scc1 L_spare')
    snap = e.snapshot()
    full_path()
    e.restore(snap)
    spare_path()
    e.raw('L_gemm2:')
    e.fence()
    e.vm = [dict(regs=set(), tag='any', opt=True)]
    e.lg = []
    gemm2()
    e.raw('L_end:')
    e('s_endpgm')
    hdr = open('parallel_sum__ssm_conv_s4d__mixer_channel_mlp__prompt.s.ref').read().split('; Override launch')[0]
    s = hdr + '; @launch grid=(256,1,1) block=(256,1,1) lds=%d\n' % LDS_BYTES
    s += '.amdgcn_target "amdgcn-amd-amdhsa--gfx950"\n.text\n.globl %s\n.p2align 8\n.type %s,@function\n%s:\n' % (KN, KN, KN)
    s += e.text()
    s += '.p2align 6\n.type L_tab,@object\nL_tab:\n'
    tab = T.gather_table()
    for k in range(0, len(tab), 8): s += '.long ' + ', '.join('0x%08x' % x for x in tab[k:k + 8]) + '\n'
    s += 'L_tab_end:\n.size L_tab, L_tab_end-L_tab\n'
    s += '''.section .rodata,"a"
.p2align 6
.amdhsa_kernel %s
  .amdhsa_next_free_vgpr 512
  .amdhsa_next_free_sgpr 102
  .amdhsa_accum_offset 256
  .amdhsa_group_segment_fixed_size 0
  .amdhsa_kernarg_size 120
  .amdhsa_user_sgpr_count 2
  .amdhsa_user_sgpr_kernarg_segment_ptr 1
  .amdhsa_system_sgpr_workgroup_id_x 1
  .amdhsa_float_denorm_mode_32 3
.end_amdhsa_kernel
''' % KN
    open(sys.argv[1], 'w').write(s)
    print('instructions', e.nins, 'nops', e.nnop)

main()
```

```python
import sys, os, struct
sys.path.insert(0, os.path.dirname(os.path.abspath(__file__)))
from emit import Emit, interleave
import tables as T

KN = 'parallel_sum__ssm_conv_s4d__mixer_channel_mlp__prompt_kernel'
OPT = dict(stamps=0)
for a_ in sys.argv[2:]:
    k_, v_ = a_.split('='); OPT[k_] = int(v_)
def opt(k, d): return OPT.get(k, d)

FA, FW, FH, FY = 0, 1024, 2048, 10240
STATS = 0x10000
UOFF, YOFF, W2P, HOFF = 0x100000, 0x400000, 0x700000, 0xA00000
STAMP = 0x1800000
WSSZ = 0x2000000
OOB = 0x10000000
SPIN = 20000
SLOT = 32768
LNS = 131072
RARR = 131072
UARR = RARR + 8448
KC = UARR + 9280
B1L = KC + 9216
CSL = B1L + 512
assert CSL + 512 <= 163840
PKS = 141824
KTAB = 65536
KTAB_SP = 0
XCH = 0
RED = 0
CHP = 57 * 528
LDS_BYTES = 163840
LOG2E, INV2PI = 0x3fb8aa3b, 0x3e22f983
f2u = lambda f: struct.unpack('<I', struct.pack('<f', f))[0]

SX, SW1, SWS, SH, SW2, SO = 4, 8, 12, 16, 20, 24
sW, sXCD, sJ, sMI, sNI, sM64, sN80, sPAIR = 28, 29, 30, 31, 32, 33, 34, 35
P_U, P_LA, P_AI, P_CR, P_CI, P_LDT, P_DSK, P_BX, P_W1, P_B1, P_W2, P_B2, P_OUT, P_DBG, P_WS = range(36, 66, 2)
sHS0, sHS1, sFH, sSTAT, sUL0, sUL1, sYS, sFY, sW2A, sHSA, sHLA, sYA, sYB, sOUT, sPK0, sB1 = range(36, 52)
sO, sCH = 52, 53
sDX, sDW, sSPIN, sK, sS0, sXB, sWB = 72, 73, 74, 75, 76, 78, 79
sKS = 80
sFHP, sPK1 = 94, 95
sFYP, sB2 = 48, 50
sTB8, sM0, sIT, sU0 = 96, 97, 98, 99
sST = 100

def srd(n): return 's[%d:%d]' % (n, n + 3)
def sp(n): return 's[%d:%d]' % (n, n + 1)
def v(n, k=1): return 'v%d' % n if k == 1 else 'v[%d:%d]' % (n, n + k - 1)
def a(n, k=1): return 'a%d' % n if k == 1 else 'a[%d:%d]' % (n, n + k - 1)

vGI = 2
vPAR = 176
vDS = 12
vBAND = 192
vSEL = 212
vW2O = 220
vKT, vKA, vKA2, vC1, vC2, vZS = 222, 223, 224, 225, 226, 227
vPL, vPA = 228, 229
vSTAMP = 231
vSTASH = 232
vSTAT = 232
vRW, vR8, vR8h, vR4, vUB, vUG, vUL, vZP, vXW, vXR, vYO, vHS, vB1W, vCSW, vBCR, vSTO, vB1R, vPA2 = range(236, 254)

e = Emit()
nlab = [0]
def lab(s):
    nlab[0] += 1
    return 'L_%s_%d' % (s, nlab[0])

def stamp(i):
    if not OPT['stamps']: return
    e(('s_memtime %s' if OPT['stamps'] == 2 else 's_memrealtime %s') % sp(sST))
    e('v_writelane_b32 %s, s%d, %d' % (v(vSTAMP), sST, i))

def put(item):
    if isinstance(item, list):
        for x in item: put(x)
    elif isinstance(item, tuple): e(item[0], tag=item[1])
    elif callable(item): item()
    else: e(item)
def size(item):
    if isinstance(item, list): return sum(size(x) for x in item)
    return 3 if callable(item) else 1

def stash_reg(j, db):
    n = (j * 5 + db) * 4
    return a(n, 4) if n < 256 else v(vSTASH + n - 256, 4)
def stash_loads():
    G = []
    for j in range(14):
        for db in range(5):
            g = []
            if db == 0: g.append('s_mul_i32 s%d, s%d, 5' % (sS0 + (j & 1), sKS + j))
            g.append(('buffer_load_dwordx4 %s, %s, %s, s%d offen offset:%d sc1' % (stash_reg(j, db), v(vW2O + (db == 4)), srd(SW2), sS0 + (j & 1), (db & 3) * 1024), 'stash'))
            G.append(g)
    return G
def take(L, n):
    r = L[:n]; del L[:n]; return r

def poll(vdst, nreg, load, name):
    ok, lp = lab(name + '_ok'), lab(name + '_spin')
    def cmp(emit):
        for k in range(1, nreg): emit('v_and_b32 %s, %s, %s' % (v(vdst), v(vdst), v(vdst + k)))
        emit('v_cmp_ne_u32 vcc, 1, %s' % v(vdst))
    cmp(e)
    e('s_cbranch_vccz %s' % ok)
    r = lambda s: e.raw('    ' + s)
    r('s_mov_b32 s%d, %d' % (sSPIN, SPIN))
    e.raw(lp + ':')
    r('s_sleep %d' % opt('sleep', 8)); r(load); r('s_waitcnt vmcnt(0)')
    cmp(r)
    r('s_cbranch_vccz %s' % ok)
    r('s_sub_u32 s%d, s%d, 1' % (sSPIN, sSPIN)); r('s_cmp_lg_u32 s%d, 0' % sSPIN); r('s_cbranch_scc1 %s' % lp)
    e.raw(ok + ':')

def flag_store(s, off=0, optional=False):
    e('v_mov_b32 v11, 1')
    e('s_mov_b64 exec, 1')
    e('buffer_store_dword v11, off, %s, s%d offset:%d sc1' % (srd(SWS), s, off), tag='flag', opt=optional)
    e('s_mov_b64 exec, -1')

def mk_srd(s, p, n, add=None):
    L = []
    if add is None: L += ['s_mov_b32 s%d, s%d' % (s, p), 's_mov_b32 s%d, s%d' % (s + 1, p + 1)]
    else: L += [['s_add_u32 s%d, s%d, s%d' % (s, p, add), 's_addc_u32 s%d, s%d, 0' % (s + 1, p + 1)]]
    return L + ['s_mov_b32 s%d, %d' % (s + 2, n), 's_mov_b32 s%d, 0x20000' % (s + 3)]

vXD, vWD = 16, 20
vXB, vWA = 24, 28
vCSEL = 36
vACC = 40
vCS = 104
vKV = 108
aFP, aFQ = 192, 224

def prologue():
    e('s_cmp_ge_u32 s2, 256')
    e('s_cbranch_scc1 L_end')
    e('s_load_dwordx16 s[36:51], s[0:1], 0')
    e('s_load_dwordx8 s[52:59], s[0:1], 64')
    e('s_load_dwordx4 s[60:63], s[0:1], 96')
    e('s_load_dwordx2 s[64:65], s[0:1], 112')
    if OPT['stamps']: e('v_mov_b32 %s, 0' % v(vSTAMP))
    e('v_lshrrev_b32 v13, 6, v0')
    e('v_and_b32 v0, 63, v0')
    e('v_readfirstlane_b32 s%d, v13' % sW)
    e('s_and_b32 s%d, s2, 7' % sXCD)
    e('s_lshr_b32 s%d, s2, 3' % sJ)
    e('v_lshlrev_b32 v1, 4, v0')
    e('s_getpc_b64 s[66:67]')
    e.raw('L_pc:')
    e('s_lshl_b32 s68, s%d, 2' % sJ)
    e('s_add_u32 s68, s68, s%d' % sW)
    e('s_lshl_b32 s68, s68, 9')
    e('v_and_b32 v13, 3, v0')
    e('v_lshl_add_u32 v13, v13, 7, s68')
    e('v_min_u32 v13, L_tab_end-L_pc-4, v13')
    e('global_load_dword v11, v13, s[66:67]', tag='pf')
    e('s_lshl_b32 s%d, s%d, 5' % (sTB8, sXCD)); e('s_add_u32 s%d, s%d, s%d' % (sTB8, sTB8, sJ))
    e('s_and_b32 s68, s%d, 3' % sJ)
    e('s_lshr_b32 s%d, s%d, 2' % (sN80, sJ))
    e('s_lshl_b32 s%d, s%d, 2' % (sM64, sXCD)); e('s_add_u32 s%d, s%d, s68' % (sM64, sM64))
    e('s_lshr_b32 s69, s%d, 1' % sXCD); e('s_lshl_b32 s69, s69, 2'); e('s_add_u32 s%d, s69, s68' % sMI)
    e('s_and_b32 s69, s%d, 1' % sXCD); e('s_mul_i32 s69, s69, 7'); e('s_add_u32 s%d, s69, s%d' % (sNI, sN80))
    e('s_mul_i32 s%d, s%d, 40' % (sPAIR, sXCD))
    e('v_lshrrev_b32 v13, 5, v0'); e('v_and_b32 v14, 31, v0'); e('v_mul_u32_u24 v15, 1280, v13')
    e('v_lshl_add_u32 v76, v14, 4, v15'); e('v_lshl_add_u32 v77, v14, 3, v15')
    e('s_mul_i32 s70, s%d, 10240' % sTB8); e('s_mul_i32 s69, s%d, 2560' % sW); e('s_add_u32 s70, s70, s69')
    e('s_mul_i32 s69, s%d, 23' % sN80); e('s_lshr_b32 s69, s69, 4'); e('s_mul_i32 s68, s68, 5'); e('s_lshr_b32 s68, s68, 1')
    e('s_add_u32 s%d, s69, s68' % sK); e('s_sub_u32 s69, s%d, 10' % sK); e('s_cmp_ge_u32 s%d, 10' % sK); e('s_cselect_b32 s%d, s69, s%d' % (sK, sK))
    e('s_mul_i32 s69, s2, 52429'); e('s_lshr_b32 s69, s69, 18'); e('s_mul_i32 s68, s69, 5'); e('s_sub_u32 s68, s2, s68')
    e('s_mul_i32 s69, s69, 40960'); e('s_lshl_b32 s68, s68, 8'); e('s_add_u32 s71, s69, s68')
    put(g1_addr())
    e('v_mul_u32_u24 v13, 640, v14'); e('v_lshrrev_b32 v14, 1, v14'); e('v_bfe_u32 v15, v0, 1, 3'); e('v_xor_b32 v15, v15, v14')
    e('v_lshl_add_u32 v13, v15, 5, v13'); e('v_and_b32 v15, 1, v0'); e('v_lshl_add_u32 v13, v15, 4, v13')
    e('s_mul_i32 s68, s%d, 10240' % sW); e('v_add_u32 v84, s68, v13'); e('v_xor_b32 v85, 128, v84'); e('v_add_u32 v85, 5120, v85')
    put(mk_srd(SX, P_U, 2621440))
    e('buffer_load_dwordx4 v[40:43], v76, %s, s70 offen' % srd(SX), tag='ln')
    e('buffer_load_dwordx4 v[44:47], v76, %s, s70 offen offset:512' % srd(SX), tag='ln')
    e('buffer_load_dwordx2 v[48:49], v77, %s, s70 offen offset:1024' % srd(SX), tag='ln')
    put(mk_srd(SH, P_W2, 2211840))
    e('s_lshl_b32 s68, s%d, 11' % sW)
    put(pack_dma(0))
    put(mk_srd(SW1, P_W1, 2211840))
    stamp(0)

def pack_dma(k):
    return [['s_add_u32 m0, s68, %d' % (PKS + 8192 * k + 1024 * i), ('buffer_load_dwordx4 v%d, %s, s71 offen lds' % (84 + i, srd(SH)), 'pk')] for i in range(2)]

def late_setup():
    L = ['s_lshl_b32 s68, s2, 2', 's_add_u32 s68, s68, s%d' % sW, 's_lshl_b32 s68, s68, 7', 's_add_u32 s%d, s68, L_sc-L_pc' % sIT,
         ] + ([] if opt('latesc', 0) else ['s_load_dwordx16 s[80:95], s[66:67], s%d' % sIT, 's_add_u32 s%d, s%d, 64' % (sIT, sIT)])
    L += mk_srd(SWS, P_WS, WSSZ) + mk_srd(SO, P_OUT, 2621440)
    if opt('tlb', 0): L += ['v_min_u32 v13, 17, v0', 'v_lshlrev_b32 v13, 20, v13', ('buffer_load_dword v230, v13, %s, 0 offen' % srd(SWS), 'pf')]
    L += ['s_and_b32 s%d, s%d, 1' % (sO, sW), 's_lshr_b32 s%d, s%d, 1' % (sCH, sW)]
    L += ['s_lshl_b32 s69, s%d, 10' % sO, 's_add_u32 s69, s69, L_tab-L_pc', 'v_add_u32 v13, s69, v1',
          ('global_load_dwordx4 v[2:5], v13, s[66:67]', 'tab'),
          's_lshl_b32 s69, s%d, 8' % sO, 's_add_u32 s69, s69, L_tab-L_pc+2048', 'v_lshl_add_u32 v13, v0, 2, s69',
          ('global_load_dword v6, v13, s[66:67]', 'tab')]
    return L
LOAD_B = 's_load_dwordx16 s[36:51], s[66:67], s%d' % sIT

def scalar_table():
    out = []
    for wg in range(256):
        xcd, j = wg & 7, wg >> 3
        mp, n80 = j & 3, j >> 2
        m64, mi, ni = 4 * xcd + mp, 4 * (xcd >> 1) + mp, 7 * (xcd & 1) + n80
        pair = 40 * xcd + (j if j < 28 else 28 + 3 * (j - 28))
        for w in range(4):
            o, ch = w & 1, w >> 1
            rot = (n80 + 3 * (mp >> 1)) % 7
            q = [w + 4 * ((i + rot) % 7) for i in range(7)]
            k0 = [((2 * x + (m64 & 1)) << 10) if x < 27 else OOB for x in q]
            A = k0 + [x ^ 1024 for x in k0] + [FH + m64 * 128, FY + ((xcd >> 2) * 640 + 80 * n80) * 4]
            hs0 = ((217 * ch + 4 * ni + 2 * o) << 10) if 4 * ni + 2 * o < 54 else OOB
            ul0 = UOFF + w * 64 * 10240 + pair * 32
            c = 2 * pair + ch
            ya = YOFF + n80 * 80 * 4096 + m64 * 128
            last = min(ni * 256 + o * 128, 3328)
            def pko(u, i):
                D = 8 * (u % 5) + 2 * w + i
                return W2P + ((D // 5) * 54 + u // 5) * 5120 + (D % 5) * 1024 if u < 270 else 0x40000000
            PK = [pko(wg, 0), pko(wg, 1)]
            u2 = 256 + 8 * (j - 28) + xcd
            B = [hs0, hs0 ^ 1024, FH + ((2 * mi + ch) * 32 + 2 * ni + o) * 4, STATS + (128 * mi + 64 * ch) * 8,
                 ul0, ul0 + 32 * 10240, YOFF + c * 4096 + o * 2048, FY + (o * 640 + c) * 4,
                 W2P + n80 * 54 * 5120, HOFF + mi * 8 * 55296, HOFF + m64 * 4 * 55296,
                 ya + w * 65536, ya + 64 * 4096 + ch * 64, (4 * m64 + w) * 16 * 1280 + n80 * 160, n80 * 160, last]
            if j >= 28: B[0], B[1] = pko(u2, 0), pko(u2, 1)
            B[14] = PK[0]; A[15] = PK[1]
            out += A + B
    return out

def bands():
    L = ['v_and_b32 v13, 15, v0', 'v_lshrrev_b32 v14, 4, v0', 'v_lshlrev_b32 v14, 3, v14',
         'v_sub_u32 v15, v14, v13', 'v_add_u32 v15, 15, v15', 'v_min_u32 v15, 31, v15']
    for bi, nm in enumerate(('b5', 'b3a', 'b3b', 'b9', 'b7')):
        L += ['s_mov_b32 s68, %d' % T.BANDS[nm], 'v_lshrrev_b32 v14, v15, s68']
        for q in range(4):
            d = v(vBAND + 4 * bi + q)
            L += ['v_bfe_u32 %s, v14, %d, 2' % (d, 2 * q), 'v_lshl_or_b32 %s, %s, 15, %s' % (d, d, d),
                  'v_and_b32 %s, 0x10001, %s' % (d, d), 'v_mul_u32_u24 %s, 0x3f80, %s' % (d, d)]
    return L

def sels():
    L = ['v_and_b32 v13, 15, v0', 'v_lshrrev_b32 v14, 4, v0', 'v_lshlrev_b32 v14, 3, v14', 'v_sub_u32 v13, v13, v14',
         'v_and_b32 v14, 1, v13', 'v_lshlrev_b32 v14, 4, v14', 'v_mov_b32 v15, 0x3f80', 'v_lshlrev_b32 v14, v14, v15', 'v_ashrrev_i32 v13, 1, v13']
    for half in range(2):
        for q in range(4):
            L += [['v_cmp_eq_i32 vcc, %d, v13' % (q - 8 * half), 's_nop 1', 'v_cndmask_b32 %s, 0, v14, vcc' % v(vSEL + 4 * half + q)]]
    return L

def param_loads(spair, dst=vPAR):
    L = ['s_lshl_b32 s68, s%d, 1' % spair, 's_add_u32 s68, s68, s%d' % sCH, 's_lshl_b32 s70, s68, 1', 's_lshl_b32 s68, s68, 8',
         's_lshl_b32 s69, s%d, 7' % sO, 's_add_u32 s68, s68, s69', 'v_lshl_add_u32 v13, v0, 1, s68', 'v_mov_b32 v14, s70']
    for k, p in enumerate((P_LA, P_AI, P_CR, P_CI)):
        L.append(('global_load_ushort %s, v13, %s' % (v(dst + k), sp(p)), 'par'))
    L.append(('global_load_ushort %s, v14, %s' % (v(dst + 4), sp(P_LDT)), 'par'))
    L.append(('global_load_ushort %s, v14, %s' % (v(dst + 5), sp(P_DSK)), 'par'))
    return L

def w2_setup():
    return mk_srd(SW2, P_WS, 54 * 5120, sW2A) + ['v_mov_b32 %s, v1' % v(vW2O), 'v_add_u32 %s, 4096, v1' % v(vW2O + 1)]

def conv_addr(tab):
    L = ['v_and_b32 v13, 15, v0', 'v_lshrrev_b32 v14, 4, v0']
    L += ['s_mul_i32 s68, s%d, %d' % (sCH, CHP), 's_add_u32 s68, s68, %d' % tab, 's_lshl_b32 s70, s%d, 8' % sO, 's_add_u32 s70, s70, s68',
          'v_lshl_add_u32 %s, v0, 2, s70' % v(vKT),
          'v_mul_u32_u24 v15, 528, v13', 'v_lshl_add_u32 v15, v14, 4, v15', 's_mul_i32 s70, s%d, %d' % (sO, 16 * 528), 's_add_u32 s70, s70, s68',
          'v_add_u32 %s, s70, v15' % v(vKA), 's_add_u32 s68, s68, %d' % (32 * 528), 'v_add_u32 %s, s68, v15' % v(vKA2)]
    L += ['s_mul_i32 s68, s%d, 1536' % sCH, 's_add_u32 s68, s68, %d' % KC, 'v_mov_b32 %s, s68' % v(vZS)]
    L += ['v_lshlrev_b32 v15, 4, v13', 'v_lshl_add_u32 %s, v14, 3, v15' % v(vC1), 'v_lshlrev_b32 v15, 3, v13', 'v_lshl_add_u32 %s, v14, 7, v15' % v(vC2),
          ['v_cmp_gt_u32 vcc, 2, v14', 'v_lshlrev_b32 v15, 5, v13', 'v_lshl_add_u32 v15, v14, 3, v15', 'v_cndmask_b32 %s, %s, %s, vcc' % (v(vC1), v(vC2), v(vC1))],
          'v_add_u32 %s, 512, %s' % (v(vC1), v(vC1)),
          ['s_cmp_eq_u32 s%d, 0' % sO, 's_cselect_b64 s[70:71], -1, 0', 'v_cndmask_b32 %s, %s, v15, s[70:71]' % (v(vC1), v(vC1))],
          'v_add_u32 %s, s68, %s' % (v(vC1), v(vC1)),
          'v_lshlrev_b32 v15, 2, v13', 'v_lshl_add_u32 v15, v14, 7, v15', 'v_add_u32 v15, 1024, v15', 'v_mov_b32 %s, 1296' % v(vC2),
          ['v_cmp_gt_u32 vcc, 2, v14', 's_nop 1', 'v_cndmask_b32 %s, %s, v15, vcc' % (v(vC2), v(vC2))],
          ['v_cmp_eq_u32 vcc, 32, v0', 'v_mov_b32 v15, 1280', 's_nop 0', 'v_cndmask_b32 %s, %s, v15, vcc' % (v(vC2), v(vC2))],
          'v_add_u32 %s, s68, %s' % (v(vC2), v(vC2))]
    for k in range(8, -1, -1):
        L.append('v_add_u32_sdwa %s, s68, %s dst_sel:DWORD dst_unused:UNUSED_PAD src0_sel:DWORD src1_sel:WORD_%d' % (v(vGI + k), v(vGI + k // 2), k & 1))
    L += ['s_mul_i32 s68, s%d, 4224' % sCH, 's_add_u32 s68, s68, %d' % RARR, 's_lshl_b32 s69, s%d, 10' % sO, 's_add_u32 s69, s69, s68',
          'v_add_u32 %s, s69, v1' % v(vRW),
          'v_sub_u32 v15, 15, v13', 'v_and_b32 %s, 1, v15' % v(vR4), 'v_mul_u32_u24 %s, 2110, %s' % (v(vR4), v(vR4)),
          'v_lshl_add_u32 v15, v15, 1, %s' % v(vR4), 'v_add_u32 v15, s68, v15', 'v_lshl_add_u32 %s, v14, 4, v15' % v(vR8),
          'v_add_u32 %s, 1024, %s' % (v(vR8h), v(vR8)), 'v_lshl_add_u32 %s, v14, 3, v15' % v(vR4), 'v_add_u32 %s, 1024, %s' % (v(vR4), v(vR4))]
    L += ['s_mul_i32 s68, s%d, 4640' % sCH, 's_add_u32 s68, s68, %d' % UARR, 'v_min_u32 v15, 33, v0', 'v_lshl_add_u32 %s, v15, 4, s68' % v(vZP),
          's_add_u32 s68, s68, %d' % (544 - 32 - 512), 'v_lshlrev_b32 v15, 5, v13', 'v_lshl_add_u32 %s, v14, 4, v15' % v(vUB), 'v_add_u32 %s, s68, %s' % (v(vUB), v(vUB))]
    L += ['v_and_b32 %s, 1, v14' % v(vYO), 'v_lshl_add_u32 %s, %s, 9, v15' % (v(vYO), v(vYO)), 'v_lshrrev_b32 v15, 1, v14', 'v_lshl_add_u32 %s, v15, 4, %s' % (v(vYO), v(vYO))]
    L += ['v_lshrrev_b32 v13, 1, v0', 'v_and_b32 v14, 1, v0', 'v_mul_u32_u24 v15, 10240, v13', 'v_lshl_add_u32 %s, v14, 4, v15' % v(vUG),
          'v_mul_u32_u24 v14, 4640, v14', 'v_lshl_add_u32 v13, v13, 4, v14', 's_lshl_b32 s68, s%d, 10' % sW, 's_add_u32 s68, s68, %d' % (UARR + 544), 'v_add_u32 %s, s68, v13' % v(vUL)]
    L += ['s_lshl_b32 s68, s%d, 13' % sCH, 's_lshl_b32 s69, s%d, 12' % sO, 's_add_u32 s68, s68, s69', 'v_add_u32 %s, s68, v1' % v(vXW), 'v_xor_b32 %s, 4096, %s' % (v(vXR), v(vXW))]
    return L

def red32(r, t):
    e('v_add_f32_dpp %s, %s, %s quad_perm:[1,0,3,2] row_mask:0xf bank_mask:0xf' % (v(r), v(r), v(r)))
    e('v_add_f32_dpp %s, %s, %s quad_perm:[2,3,0,1] row_mask:0xf bank_mask:0xf' % (v(r), v(r), v(r)))
    e('v_add_f32_dpp %s, %s, %s row_half_mirror row_mask:0xf bank_mask:0xf' % (v(r), v(r), v(r)))
    e('v_add_f32_dpp %s, %s, %s row_mirror row_mask:0xf bank_mask:0xf' % (v(r), v(r), v(r)))
    e('v_mov_b32 %s, %s' % (v(t), v(r)))
    e('v_permlane16_swap_b32 %s, %s' % (v(r), v(t)))
    e('v_add_f32 %s, %s, %s' % (v(r), v(r), v(t)))

def ln_addr():
    L = ['s_mul_i32 s68, s%d, 2688' % sW, 's_add_u32 s68, s68, %d' % LNS, 'v_lshrrev_b32 v13, 5, v0', 'v_lshlrev_b32 v15, 6, v13',
         'v_add3_u32 v78, v76, v15, s68', 'v_add3_u32 v79, v77, v15, s68', 'v_lshlrev_b32 v82, 3, v13',
         'v_bfe_u32 v14, v0, 2, 2', 'v_mul_u32_u24 v14, 1344, v14', 'v_and_b32 v15, 3, v0', 'v_lshl_add_u32 v14, v15, 3, v14',
         'v_lshrrev_b32 v15, 4, v0', 's_lshl_b32 s68, s%d, 7' % sW, 's_add_u32 s68, s68, %d' % LNS, 'v_lshl_add_u32 v80, v15, 5, v14', 'v_add_u32 v80, s68, v80',
         'v_and_b32 v15, 1, v15', 's_lshl_b32 s68, s%d, 6' % sW, 's_add_u32 s68, s68, %d' % (LNS + 1024), 'v_lshl_add_u32 v81, v15, 5, v14', 'v_add_u32 v81, s68, v81',
         's_lshl_b32 s68, s%d, 6' % sTB8, 's_lshl_b32 s69, s%d, 4' % sW, 's_add_u32 s68, s68, s69', 's_add_u32 s77, s68, %d' % STATS,
         's_mul_i32 s68, s%d, 10240' % sTB8, 's_add_u32 s68, s68, %d' % UOFF, 's_lshl_b32 s71, s%d, 10' % sW, 's_add_u32 s71, s71, s68', 's_add_u32 s76, s71, 4096',
         's_lshl_b32 s99, s%d, 9' % sW, 's_add_u32 s99, s99, s68', 's_add_u32 s99, s99, 8192', 'v_mov_b32 %s, 0' % v(vPA)]
    L += ['v_bfe_u32 v13, v0, 2, 3', 's_lshl_b32 s68, s%d, 1' % sW, 'v_xor_b32 v15, s68, v13', 'v_lshrrev_b32 v14, 5, v0', 'v_lshl_add_u32 v13, v14, 4, v13',
          'v_lshlrev_b32 v13, 8, v13', 'v_lshl_add_u32 v13, v15, 5, v13', 'v_and_b32 v15, 3, v0', 'v_lshl_add_u32 v13, v15, 3, v13',
          'v_add_u32 v86, %d, v13' % PKS, 'v_xor_b32 v87, 32, v86']
    return L

def layernorm(extra1, extra2, extra3, units=1):
    X = 52
    stamp(16)
    e.wait_vm('ln')
    stamp(17)
    if opt('latesc', 0):
        e('s_load_dwordx16 s[80:95], s[66:67], s%d' % sIT); e('s_add_u32 s%d, s%d, 64' % (sIT, sIT)); e(LOAD_B)
    for k in range(10):
        e('v_lshlrev_b32 %s, 16, %s' % (v(X + 2 * k), v(40 + k)))
        e('v_and_b32 %s, 0xffff0000, %s' % (v(X + 2 * k + 1), v(40 + k)))
    put(extra1)
    stamp(18)
    e('v_pk_add_f32 v[72:73], v[52:53], v[54:55]')
    e('v_pk_add_f32 v[74:75], v[56:57], v[58:59]')
    for k in range(4, 10, 2):
        e('v_pk_add_f32 v[72:73], v[72:73], %s' % v(X + 2 * k, 2))
        e('v_pk_add_f32 v[74:75], v[74:75], %s' % v(X + 2 * k + 2, 2))
    e('v_pk_add_f32 v[72:73], v[72:73], v[74:75]')
    e('v_add_f32 v72, v72, v73')
    red32(72, 73)
    e('v_mul_f32 v72, 0x3acccccd, v72')
    for k in range(10):
        e('v_pk_add_f32 %s, %s, v[72:73] op_sel_hi:[1,0] neg_lo:[0,1] neg_hi:[0,1]' % (v(X + 2 * k, 2), v(X + 2 * k, 2)))
    e('v_pk_mul_f32 v[74:75], v[52:53], v[52:53]')
    e('v_pk_mul_f32 v[50:51], v[54:55], v[54:55]')
    for k in range(2, 10, 2):
        e('v_pk_fma_f32 v[74:75], %s, %s, v[74:75]' % (v(X + 2 * k, 2), v(X + 2 * k, 2)))
        e('v_pk_fma_f32 v[50:51], %s, %s, v[50:51]' % (v(X + 2 * k + 2, 2), v(X + 2 * k + 2, 2)))
    e('v_pk_add_f32 v[74:75], v[74:75], v[50:51]')
    e('v_add_f32 v74, v74, v75')
    red32(74, 75)
    e('v_mul_f32 v74, 0x3acccccd, v74')
    e('v_add_f32 v75, 0x3727c5ac, v74')
    e('v_rsq_f32 v50, v75')
    stamp(19)
    put(extra2)
    stamp(20)
    for k in range(10):
        e('v_pk_mul_f32 %s, %s, v[50:51] op_sel_hi:[1,0]' % (v(X + 2 * k, 2), v(X + 2 * k, 2)))
    for k in range(10):
        e('v_cvt_pk_bf16_f32 %s, %s, %s' % (v(40 + k), v(X + 2 * k), v(X + 2 * k + 1)))
    e('ds_write_b128 v78, v[40:43]')
    e('ds_write_b128 v78, v[44:47] offset:512')
    e('ds_write_b64 v79, v[48:49] offset:1024')
    e('v_mul_f32 v74, v74, v50')
    e('v_mul_f32 v74, v74, v50')
    e('v_add_f32 v74, 0x3727c5ac, v74')
    e('v_rsq_f32 v74, v74')
    e('s_mov_b32 exec_lo, 1'); e('s_mov_b32 exec_hi, 1')
    e('v_mul_f32 v74, v74, v50')
    e('v_mul_f32 v75, v74, v72')
    e('buffer_store_dwordx2 v[74:75], v82, %s, s77 offen sc1' % srd(SWS), tag='u')
    e('s_mov_b64 exec, -1')
    stamp(21)
    e.wait_vm('pk', lg0=True)
    e('s_barrier')
    stamp(22)
    for r, (ad, off) in enumerate(((80, 0), (80, 512), (81, 0))):
        e('ds_read_b64_tr_b16 %s, %s offset:%d' % (v(52 + 4 * r, 2), v(ad), off))
        e('ds_read_b64_tr_b16 %s, %s offset:%d' % (v(54 + 4 * r, 2), v(ad), off + 4 * 1344))
    for k in range(units):
        for i in range(2):
            e('ds_read_b64_tr_b16 %s, v%d offset:%d' % (v(64 + 8 * k + 4 * i, 2), 86 + i, 8192 * k))
            e('ds_read_b64_tr_b16 %s, v%d offset:%d' % (v(66 + 8 * k + 4 * i, 2), 86 + i, 8192 * k + 2048))
    put(extra3)
    e('buffer_store_dwordx4 v[52:55], v1, %s, s71 offen sc1' % srd(SWS), tag='u')
    e('buffer_store_dwordx4 v[56:59], v1, %s, s76 offen sc1' % srd(SWS), tag='u')
    e('s_mov_b32 exec_hi, 0')
    e('buffer_store_dwordx4 v[60:63], v1, %s, s99 offen sc1' % srd(SWS), tag='u')
    e('s_mov_b32 exec_hi, -1')
    for k in range(units):
        for i in range(2):
            e('buffer_store_dwordx4 %s, v1, %s, s%d offen sc1' % (v(64 + 8 * k + 4 * i, 4), srd(SWS), ((sPK0, sPK1), (sHS0, sHS1))[k][i]), tag='u')
    e(READY_LOAD, tag='rdy')
    stamp(23)

READY_LOAD = 'global_load_dword %s, %s, %s sc1' % (v(vPL), v(vPA), sp(P_DBG))
def fa_publish():
    skip = lab('fa_skip')
    e('s_cmp_lg_u32 s%d, 0' % sW)
    e.wait_vm('rdy')
    e('s_cbranch_scc1 %s' % skip)
    poll(vPL, 1, READY_LOAD, 'rdy')
    e('s_lshl_b32 s99, s%d, 2' % sTB8)
    flag_store(99, optional=True)
    e.raw(skip + ':')

def g1_addr():
    L = ['v_lshrrev_b32 v13, 3, v0', 'v_mul_u32_u24 v13, 1280, v13', 'v_lshrrev_b32 v14, 4, v0', 'v_and_b32 v15, 7, v0',
         'v_xor_b32 v15, v15, v14', 's_mul_i32 s68, s%d, %d' % (sW, 32 * 1280),
         'v_lshl_add_u32 v13, v15, 4, v13', 'v_add_u32 %s, s68, v13' % v(vXD), 'v_xor_b32 v13, 64, %s' % v(vXD),
         'v_add_u32 %s, %d, v13' % (v(vXD + 1), 8 * 1280), 'v_add_u32 %s, %d, %s' % (v(vXD + 2), 16 * 1280, v(vXD)),
         'v_add_u32 %s, %d, v13' % (v(vXD + 3), 24 * 1280)]
    L += ['v_mul_u32_u24 v13, 3456, v14', 'v_bfe_u32 v15, v0, 1, 3', 'v_lshlrev_b32 v14, 1, v14', 'v_xor_b32 v15, v15, v14',
          'v_lshl_add_u32 v13, v15, 5, v13', 'v_and_b32 v15, 1, v0', 'v_lshl_add_u32 v13, v15, 4, v13', 's_mul_i32 s68, s%d, %d' % (sW, 16 * 3456),
          'v_add_u32 %s, s68, v13' % v(vWD)]
    for i in range(1, 4): L.append('v_add_u32 %s, %d, %s' % (v(vWD + i), 4 * 3456 * i, v(vWD)))
    L += ['s_mul_i32 s%d, s%d, %d' % (sXB, sMI, 128 * 1280), 's_lshl_b32 s%d, s%d, 8' % (sWB, sNI), 's_lshl_b32 s%d, s%d, 12' % (sM0, sW)]
    return L

def g1_read_addr():
    L = ['v_and_b32 v13, 31, v0', 'v_bfe_u32 v15, v0, 1, 3', 'v_lshrrev_b32 v14, 5, v0', 'v_xor_b32 v15, v15, v14',
         'v_lshlrev_b32 v13, 7, v13', 'v_lshl_add_u32 v13, v15, 4, v13', 's_lshl_b32 s69, s%d, 13' % sCH, 'v_add_u32 %s, s69, v13' % v(vXB)]
    for k in range(1, 4): L.append('v_xor_b32 %s, %d, %s' % (v(vXB + k), 32 * k, v(vXB)))
    L += ['v_bfe_u32 v13, v0, 2, 2', 'v_bfe_u32 v15, v0, 4, 1', 'v_lshl_or_b32 v15, v13, 1, v15', 'v_lshl_add_u32 v13, v14, 3, v13',
          'v_lshlrev_b32 v13, 8, v13', 's_lshl_b32 s69, s%d, 2' % sO, 's_lshl_b32 s68, s%d, 1' % sCH, 's_or_b32 s69, s69, s68',
          'v_xor_b32 v15, s69, v15', 'v_lshl_add_u32 v13, v15, 5, v13', 'v_and_b32 v15, 3, v0', 'v_lshl_add_u32 v13, v15, 3, v13',
          'v_add_u32 %s, 16384, v13' % v(vWA), 'v_xor_b32 %s, 64, %s' % (v(vWA + 1), v(vWA))]
    for k in range(6): L.append('v_add_u32 %s, 0x10000, %s' % (v(vXB + 6 + k), v(vXB + k)))
    L += ['v_lshrrev_b32 v13, 4, v0', 'v_xor_b32 v13, v13, v0', 'v_and_b32 v13, 1, v13', 'v_add_u32 v13, -1, v13', 'v_and_b32 %s, 0x3f803f80, v13' % v(vCSEL)]
    for k in range(1, 4): L.append('v_mov_b32 %s, %s' % (v(vCSEL + k), v(vCSEL)))
    return L

def g1_dma(s):
    slot = (s % 4) * SLOT
    head = ['s_lshl_b32 s%d, s%d, 7' % (sDX, sK), 's_add_u32 s%d, s%d, s%d' % (sDX, sDX, sXB),
            's_mul_i32 s%d, s%d, %d' % (sDW, sK, 64 * 3456), 's_add_u32 s%d, s%d, s%d' % (sDW, sDW, sWB),
            's_add_u32 s%d, s%d, 1' % (sK, sK), 's_cmp_eq_u32 s%d, 10' % sK, 's_cselect_b32 s%d, 0, s%d' % (sK, sK)]
    P = []
    for i in range(4):
        P.append(('s_add_u32 m0, s%d, %d' % (sM0, slot + i * 1024), ('buffer_load_dwordx4 %s, %s, s%d offen lds' % (v(vXD + i), srd(SX), sDX), 'st%d' % s)))
        P.append(('s_add_u32 m0, s%d, %d' % (sM0, slot + 16384 + i * 1024), ('buffer_load_dwordx4 %s, %s, s%d offen lds' % (v(vWD + i), srd(SW1), sDW), 'st%d' % s)))
    return head, P
def g1_dma_flat(s):
    h, P = g1_dma(s)
    return [h] + [[p[0], p[1]] for p in P]

def g1_reads(s, ks, F):
    slot = (s % 4) * SLOT
    hi = 6 if slot >= 65536 else 0
    so = slot & 0xffff
    L = []
    for k in range(2):
        for q in range(2):
            o = so + 8192 * ks + 4096 * k
            L.append('ds_read_b64_tr_b16 %s, %s offset:%d' % (a(F + 16 * k + 4 * q, 2), v(vWA + hi + q), o))
            L.append('ds_read_b64_tr_b16 %s, %s offset:%d' % (a(F + 16 * k + 4 * q + 2, 2), v(vWA + hi + q), o + 1024))
            L.append('ds_read_b128 %s, %s offset:%d' % (a(F + 16 * k + 8 + 4 * q, 4), v(vXB + hi + 2 * ks + k), so + 4096 * q))
    return L

def g1_mfma(F, first):
    L = []
    for k in range(2):
        for (fb, tb) in ((0, 0), (1, 0), (0, 1), (1, 1)):
            d = v(vACC + 32 * fb + 16 * tb, 16)
            L.append('v_mfma_f32_32x32x16_bf16 %s, %s, %s, %s' % (d, a(F + 16 * k + 4 * fb, 4), a(F + 16 * k + 8 + 4 * tb, 4), '0' if first and k == 0 else d))
        L.append('v_mfma_f32_16x16x32_bf16 %s, %s, %s, %s' % (v(vCS, 4), a(F + 16 * k, 4), v(vCSEL, 4), '0' if first and k == 0 else v(vCS, 4)))
    return L

def sched(m, reads, pairs, vm, stream, cap32, cap16=2):
    n = len(m)
    cap = [cap32 if '32x32' in x else cap16 for x in m]
    slots = [[] for _ in m]
    big = [i for i in range(n) if cap[i] > 2] or list(range(n))
    for k, p in enumerate(pairs):
        i = big[min(len(big) - 1, 1 + k * len(big) // max(1, len(pairs)))]
        slots[i - 1].append(p[0]); slots[i].insert(0, p[1])
    for k, g in enumerate(vm):
        slots[big[min(len(big) - 1, k * len(big) // len(vm))]].append(g)
    r = 0
    for i in range(n):
        while r < len(reads) and size(slots[i]) < min(cap[i], 3): slots[i].append(reads[r]); r += 1
    assert r == len(reads)
    for i in range(n):
        while stream and size(slots[i]) + size(stream[0]) <= max(cap[i], size(stream[0]) if not slots[i] else 0): slots[i].append(stream.pop(0))
    out = []
    for x, sl in zip(m, slots): out.append(x); out += sl
    return out
```

```python
from g2a import *

kC, kW1, kW16, kW256 = 166, 168, 170, 172
kA, kB = 174, 182
kS = (184, 186)
kP = (188, 190)
def kgen_setup(pk):
    A2, B2, DT, t0, t1 = 184, 185, 186, 189, 190
    L = ['v_lshlrev_b32 %s, 16, %s' % (v(vPAR + k), v(vPAR + k)) for k in range(6)]
    L += ['v_mul_f32 %s, 0x%x, %s' % (v(t0), LOG2E, v(vPAR + 4)), 'v_mul_f32 %s, 0x%x, %s' % (v(t1), LOG2E, v(vPAR)),
          'v_exp_f32 %s, %s' % (v(t0), v(t0)), 'v_exp_f32 %s, %s' % (v(t1), v(t1)),
          ['s_cmp_eq_u32 s%d, 0' % sO, 's_cselect_b64 vcc, 1, 0', 'v_cndmask_b32 %s, 0, %s, vcc' % (v(vDS), v(vPAR + 5))],
          'v_cvt_pk_bf16_f32 %s, %s, %s' % (v(t0), v(t0), v(t1)),
          'v_lshlrev_b32 %s, 16, %s' % (v(DT), v(t0)), 'v_and_b32 %s, 0xffff0000, %s' % (v(t1), v(t0)),
          'v_mul_f32 %s, %s, %s' % (v(t1), v(t1), v(DT)), 'v_mul_f32 %s, %s, %s' % (v(B2), v(vPAR + 1), v(DT)),
          'v_mul_f32 %s, 0x%x, %s' % (v(A2), LOG2E ^ 0x80000000, v(t1)), 'v_mul_f32 %s, 0x%x, %s' % (v(B2), INV2PI, v(B2)),
          'v_add_f32 %s, %s, %s' % (v(DT), v(DT), v(DT)),
          'v_mul_f32 %s, %s, %s' % (v(kC), v(vPAR + 2), v(DT)), 'v_mul_f32 %s, %s, %s' % (v(kC + 1), v(vPAR + 3), v(DT))]
    for (W, tt) in ((kW1, None), (kW16, 0x41800000), (kW256, 0x43800000)):
        if tt is None:
            L += ['v_fract_f32 %s, %s' % (v(t1), v(B2)), 'v_exp_f32 %s, %s' % (v(t0), v(A2))]
        else:
            L += ['v_mul_f32 %s, 0x%x, %s' % (v(t1), tt, v(B2)), 'v_mul_f32 %s, 0x%x, %s' % (v(t0), tt, v(A2)),
                  'v_fract_f32 %s, %s' % (v(t1), v(t1)), 'v_exp_f32 %s, %s' % (v(t0), v(t0))]
        L += ['v_cos_f32 %s, %s' % (v(W), v(t1)), 'v_sin_f32 %s, %s' % (v(W + 1), v(t1)),
              'v_mul_f32 %s, %s, %s' % (v(W), v(W), v(t0)),
              ('v_mul_f32_e64 %s, -%s, %s' if W == kW16 else 'v_mul_f32 %s, %s, %s') % (v(W + 1), v(W + 1), v(t0))]
    return L

def cmul(d, x, y, pk):
    if pk:
        return ['v_pk_mul_f32 %s, %s, %s op_sel:[0,0] op_sel_hi:[0,1]' % (v(d, 2), v(x, 2), v(y, 2)),
                'v_pk_fma_f32 %s, %s, %s, %s op_sel:[1,1,0] op_sel_hi:[1,0,1] neg_lo:[1,0,0]' % (v(d, 2), v(x, 2), v(y, 2), v(d, 2))]
    return ['v_mul_f32 %s, %s, %s' % (v(d), v(x), v(y)), 'v_mul_f32 %s, %s, %s' % (v(d + 1), v(x), v(y + 1)),
            'v_fma_f32 %s, -%s, %s, %s' % (v(d), v(x + 1), v(y + 1), v(d)), 'v_fmac_f32 %s, %s, %s' % (v(d + 1), v(x + 1), v(y))]

def kgen_rows(pk, write):
    L = []
    def out(row, src): L.extend(['v_cvt_pk_bf16_f32 %s, %s, %s' % (v(vKV + row), v(src), v(src + 1))] + write(row))
    def chain(row0, start, W, n):
        cur = start; out(row0, cur)
        for r in range(1, n):
            d = kP[r & 1]; L.extend(cmul(d, cur, W, pk)); out(row0 + r, d); cur = d
    L.extend(['v_mov_b32 %s, 0x3f80' % v(vKV + 41)] + write(41))
    chain(42, kW16, kW16, 15)
    chain(0, kC, kW1, 16)
    L.extend(cmul(kA, kW1, kW1, pk)); L.extend(cmul(kS[0], kC, kW256, pk)); chain(16, kS[0], kA, 8)
    L.extend(cmul(kB, kA, kA, pk)); L.extend(cmul(kS[1], kS[0], kW256, pk)); chain(24, kS[1], kB, 4)
    L.extend(cmul(kS[0], kS[1], kW256, pk)); chain(28, kS[0], kB, 4)
    L.extend(cmul(kA, kB, kB, pk))
    for f in range(4):
        L.extend(cmul(kS[(f + 1) & 1], kS[f & 1], kW256, pk)); chain(32 + 2 * f, kS[(f + 1) & 1], kA, 2)
    L.extend(cmul(kS[1], kS[0], kW256, pk)); out(40, kS[1])
    return L

def ktail(koff, extra, post=None):
    FA_, FA2, FB = 40, 72, 104
    R = []
    for ks in range(8):
        R.append('ds_read_b128 %s, %s offset:%d' % (v(FB + 4 * ks, 4), v(vKA2), 9 * 528 + 64 * ks))
        R.append('ds_read_b128 %s, %s offset:%d' % (v(FA_ + 4 * ks, 4), v(vKA), 64 * ks))
        R.append('ds_read_b128 %s, %s offset:%d' % (v(FA2 + 4 * ks, 4), v(vKA2), 64 * ks))
    put(R[:12])
    e('v_mov_b32 v28, 0')
    put(extra)
    for ks in range(8):
        e('v_mfma_f32_16x16x32_bf16 v[16:19], %s, %s, %s' % (v(FA_ + 4 * ks, 4), v(FB + 4 * ks, 4), '0' if ks == 0 else 'v[16:19]'))
        if ks < 4: put(R[12 + 3 * ks:14 + 3 * ks])
        e('v_mfma_f32_16x16x32_bf16 v[20:23], %s, %s, %s' % (v(FA2 + 4 * ks, 4), v(FB + 4 * ks, 4), '0' if ks == 0 else 'v[20:23]'))
        if ks < 4: put(R[14 + 3 * ks])
    e('ds_write_b32 %s, v28 offset:%d' % (v(vZS), koff + 2 * T.ZERO))
    if post: post()
    e('v_add_f32 v16, v16, %s' % v(vDS))
    e('v_cvt_pk_bf16_f32 v25, v18, v19'); e('v_cvt_pk_bf16_f32 v24, v16, v17')
    e('ds_write_b64 %s, v[24:25] offset:%d' % (v(vC1), koff))
    e('v_cvt_pk_bf16_f32 v26, v20, v21'); e('v_cvt_pk_bf16_f32 v27, v22, v23')
    e('ds_write_b32 %s, v26 offset:%d' % (v(vC2), koff))
    e('ds_write_b32 %s, v27 offset:%d' % (v(vC2), koff + 64))

FAALL_LOAD = 'buffer_load_dwordx4 v[212:215], v1, %s, 0 offen sc1' % srd(SWS)
def gelu_addr():
    L = ['v_bfe_u32 v13, v0, 4, 1', 'v_mul_u32_u24 v13, 55296, v13', 'v_lshrrev_b32 v14, 5, v0', 'v_lshl_add_u32 v13, v14, 8, v13',
         'v_and_b32 v15, 15, v0', 'v_lshl_add_u32 %s, v15, 4, v13' % v(vHS)]
    L += ['s_lshl_b32 s68, s%d, 8' % sO, 's_add_u32 s68, s68, %d' % B1L, 'v_and_b32 v13, 31, v0', 'v_lshl_add_u32 %s, v13, 3, s68' % v(vB1W),
          's_lshl_b32 s69, s%d, 7' % sCH, 's_add_u32 s68, s68, s69', 'v_lshl_add_u32 %s, v14, 4, s68' % v(vBCR),
          'v_and_b32 v15, 1, v0', 'v_lshlrev_b32 v15, 6, v15', 'v_lshrrev_b32 v14, 4, v0', 'v_lshl_add_u32 v15, v14, 4, v15', 'v_add_u32 %s, s68, v15' % v(vCSW),
          'v_lshlrev_b32 %s, 3, v13' % v(vSTO)]
    return L
def gelu_addr2():
    return mk_srd(SH, P_WS, 8 * 55296, sHSA) + ['v_and_b32 v13, 31, v0', 'v_lshl_add_u32 v15, v13, 2, s%d' % sB1, ('global_load_dword %s, v15, %s' % (v(vB1R), sp(P_B1)), 'b1')]

def gemm1(stash):
    cap = opt('cap', 5)
    stream = kgen_setup(False) + gelu_addr2() + w2_setup() + kgen_rows(False, lambda r: []) + conv_addr(KTAB)
    for s in range(10):
        if s == 2: stamp(24)
        e.wait_vm(('st%d' % s, 'u') if s == 2 else 'st%d' % s, lg0=True)
        if s == 2: stamp(25)
        e('s_barrier')
        if s in (1, 5, 9): stamp({1: 2, 5: 3, 9: 4}[s])
        head, pairs = g1_dma(s + 3) if s + 3 < 10 else ([], [])
        vm1, vm2 = [], []
        if s == 2: fa_publish(); stamp(26)
        if s == 3: stamp(27)
        if s == opt('fawi', 5): vm2 = [(FAALL_LOAD, 'faall')]
        if s == opt('fawc', 7):
            poll(212, 4, FAALL_LOAD, 'faall')
            vm1 = [('buffer_load_dwordx2 %s, %s, %s, s%d offen offset:%d sc1' % (v(vSTAT + 2 * tb, 2), v(vSTO), srd(SWS), sSTAT, 256 * tb), 'stat') for tb in range(2)]
        if s >= opt('fawc', 7):
            n = opt('g1st', 2)
            vm1 += take(stash, n); vm2 += take(stash, n)
        cur = stream
        if s == 9:
            print('stream overflow', size(cur)); put(cur)
            cur = ['ds_write_b32 %s, %s offset:%d' % (v(vKT), v(vKV + r), r * 528) for r in range(57)]
            cur += ['v_lshlrev_b32 v14, 16, %s' % v(vB1R), 'v_and_b32 v15, 0xffff0000, %s' % v(vB1R), 'ds_write_b64 %s, v[14:15]' % v(vB1W)]
        rd0 = g1_reads(s, 0, aFP)
        if s == 0:
            put(rd0); put(head); put([[p[0], p[1]] for p in pairs[:2]]); p2 = pairs[2:]
        else:
            put(head[:4])
            put(sched(g1_mfma(aFQ, False), rd0, pairs[:4], vm1 + ([head[4:]] if head else []), cur, cap)); p2 = pairs[4:]
        put(sched(g1_mfma(aFP, s == 0), g1_reads(s, 1, aFQ), p2, vm2, cur, cap))
        stream = cur
    put(sched(g1_mfma(aFQ, False), [], [], take(stash, opt('g1st', 2)), stream, cap))
    put(stream)

def gelu(stash):
    vB = (108, 140); vC = (124, 156); vK = 172; P, Z, O = 16, 24, 32
    e('s_mov_b32 exec_lo, 0x30003'); e('s_mov_b32 exec_hi, 0x30003')
    e('ds_write_b128 %s, %s offset:512' % (v(vCSW), v(vCS, 4)))
    e('s_mov_b64 exec, -1')
    for j in range(4):
        e('ds_read_b128 %s, %s offset:%d' % (v(vB[0] + 4 * j, 4), v(vBCR), 32 * j))
        e('ds_read_b128 %s, %s offset:%d' % (v(vC[0] + 4 * j, 4), v(vBCR), 512 + 32 * j))
    k0 = -2.0 * 0.7978845608028654 * 1.4426950408889634
    e('v_mov_b32 %s, 0x%x' % (v(vK), f2u(k0 * 0.044715)))
    e('v_mov_b32 %s, 0x%x' % (v(vK + 1), f2u(k0)))
    e('v_xor_b32 %s, 128, %s' % (v(vBCR), v(vBCR)))
    stamp(5)
    n = 0
    per = opt('gest', 2)
    for fb in range(2):
        for tb in range(2):
            st = vSTAT + 2 * tb
            for p in range(2):
                Oo = O + 4 * (n & 1)
                I = []
                for q in range(4):
                    I.append('v_pk_fma_f32 %s, %s, %s, %s op_sel:[0,1,0] op_sel_hi:[1,1,1] neg_lo:[0,1,0] neg_hi:[0,1,0]' % (v(P + 2 * q, 2), v(vC[fb] + 8 * p + 2 * q, 2), v(st, 2), v(vB[fb] + 8 * p + 2 * q, 2)))
                for q in range(4):
                    I.append('v_pk_fma_f32 %s, %s, %s, %s op_sel_hi:[1,0,1]' % (v(P + 2 * q, 2), v(vACC + 32 * fb + 16 * tb + 8 * p + 2 * q, 2), v(st, 2), v(P + 2 * q, 2)))
                for q in range(4): I.append('v_pk_mul_f32 %s, %s, %s' % (v(Z + 2 * q, 2), v(P + 2 * q, 2), v(P + 2 * q, 2)))
                for q in range(4): I.append('v_pk_fma_f32 %s, %s, %s, %s op_sel:[0,0,1] op_sel_hi:[1,0,1]' % (v(Z + 2 * q, 2), v(Z + 2 * q, 2), v(vK, 2), v(vK, 2)))
                for q in range(4): I.append('v_pk_mul_f32 %s, %s, %s' % (v(Z + 2 * q, 2), v(Z + 2 * q, 2), v(P + 2 * q, 2)))
                for q in range(8): I.append('v_exp_f32 %s, %s' % (v(Z + q), v(Z + q)))
                for q in range(4): I.append('v_pk_add_f32 %s, %s, 1.0 op_sel_hi:[1,0]' % (v(Z + 2 * q, 2), v(Z + 2 * q, 2)))
                for q in range(8): I.append('v_rcp_f32 %s, %s' % (v(Z + q), v(Z + q)))
                for q in range(4): I.append('v_pk_mul_f32 %s, %s, %s' % (v(Z + 2 * q, 2), v(Z + 2 * q, 2), v(P + 2 * q, 2)))
                for q in range(4): I.append('v_cvt_pk_bf16_f32 %s, %s, %s' % (v(Oo + q), v(Z + 2 * q), v(Z + 2 * q + 1)))
                ex = take(stash, per)
                if n == 5: ex = u_loads() + ex
                put(interleave(I, ex, 6, 44 // max(1, len(ex)), 1))
                e('buffer_store_dwordx4 %s, %s, %s, s%d offen offset:%d sc1' % (v(Oo, 4), v(vHS), srd(SH), sHS0 + fb, 512 * p), tag='h%d' % fb)
                if p == 1 and tb == 0: e('s_add_u32 s%d, s%d, %d' % (sHS0 + fb, sHS0 + fb, 2 * 55296))
                if n == 0:
                    e.barrier()
                    for j in range(4):
                        e('ds_read_b128 %s, %s offset:%d' % (v(vB[1] + 4 * j, 4), v(vBCR), 32 * j))
                        e('ds_read_b128 %s, %s offset:%d' % (v(vC[1] + 4 * j, 4), v(vBCR), 512 + 32 * j))
                n += 1

def u_loads():
    return [('buffer_load_dwordx4 v[184:187], %s, %s, s%d offen sc1' % (v(vUG), srd(SWS), sUL0), 'ul'),
            ('buffer_load_dwordx4 v[188:191], %s, %s, s%d offen sc1' % (v(vUG), srd(SWS), sUL1), 'ul')]

def conv(koff, pre, inner, zero_pad=True):
    if zero_pad:
        for k in range(4): e('v_mov_b32 v%d, 0' % (16 + k))
        e('ds_write_b128 %s, v[16:19]' % v(vZP))
    e.barrier()
    for k in range(9): e('ds_read_u16 %s, %s offset:%d' % (v(30 + k), v(vGI + k), koff))
    put(pre)
    e('ds_write_b128 %s, v[184:187]' % v(vUL))
    e('ds_write_b128 %s, v[188:191] offset:512' % v(vUL))
    for k in range(4): e('v_lshl_or_b32 %s, %s, 16, %s' % (v(40 + k), v(31 + 2 * k), v(30 + 2 * k)))
    e('ds_write_b128 %s, v[40:43]' % v(vRW))
    for k in range(4): e('v_lshl_or_b32 %s, %s, 16, %s' % (v(44 + k), v(32 + 2 * k), v(31 + 2 * k)))
    e('ds_write_b128 %s, v[44:47] offset:2112' % v(vRW))
    e('s_cmp_eq_u32 s%d, 1' % sO)
    e.barrier()
    stamp(8)
    def rd8(dst, P):
        b, o = (vR8, P // 2) if P // 2 + 3 <= 255 else (vR8h, P // 2 - 256)
        return ['ds_read2_b32 %s, %s offset0:%d offset1:%d' % (v(dst, 2), v(b), o, o + 1),
                'ds_read2_b32 %s, %s offset0:%d offset1:%d' % (v(dst + 2, 2), v(b), o + 2, o + 3)]
    def rd4(dst, P):
        o = P // 2 - 256
        return ['ds_read2_b32 %s, %s offset0:%d offset1:%d' % (v(dst, 2), v(vR4), o, o + 1)]
    def ub(dst, off): return 'ds_read_b128 %s, %s offset:%d' % (v(dst, 4), v(vUB), 2 * (off + 16) + 512)
    vF, vO = 16, 32
    SA = opt('sa', 13)
    roleB, join = lab('roleB'), lab('convjoin')
    e('s_cbranch_scc1 %s' % roleB)
    snap = e.snapshot()
    items = inner()
    def spread(M, n_mfma):
        out, k, c = [], 0, 0
        for x in M:
            out.append(x)
            if isinstance(x, str) and x.startswith('v_mfma'):
                c += 1
                while k < len(items) and c * (len(items) + 1) >= (k + 1) * n_mfma * opt('cspan', 100) // 100: out.append(items[k]); k += 1
        return out + items[k:]
    acc = lambda b: (vF + 4 * b) if b < 4 else (vO + 4 * (b - 4))
    AF, RB, NR = 48, 48 + 4 * (SA + 1), 10
    seen = set()
    def mm(b, A, B):
        d = v(acc(b), 4); c = d if b in seen else '0'; seen.add(b)
        return 'v_mfma_f32_16x16x32_bf16 %s, %s, %s, %s' % (d, v(A, 4), v(B, 4), c)
    ws = list(range(-7, 57))
    aord = []
    for w in ws:
        for b in range(8):
            if 0 <= 8 * b - w <= SA and 8 * b - w not in aord: aord.append(8 * b - w)
    AH = 8
    pre_ = [ub(RB + 4 * (k % NR), 32 * ws[k] - 16) for k in range(AH)]
    pend = [x for s in aord for x in rd8(AF + 4 * s, 512 - 32 * s)]
    put(take(pend, 2)); put(pre_[0]); put(take(pend, 2)); put(pre_[1]); put(take(pend, 2)); put(pre_[2:4]); put(take(pend, 4)); put(pre_[4:])
    M = []
    for k, w in enumerate(ws):
        grp = [mm(b, AF + 4 * (8 * b - w), RB + 4 * (k % NR)) for b in range(8) if 0 <= 8 * b - w <= SA]
        M.append(grp[0]); M += take(pend, 3)
        if k + AH < len(ws): M.append(ub(RB + 4 * ((k + AH) % NR), 32 * ws[k + AH] - 16))
        M += grp[1:]
    put(spread(M, sum(1 for x in M if x.startswith('v_mfma'))))
    for k in range(4): e('ds_write_b128 %s, %s offset:%d' % (v(vXW), v(vO + 4 * k, 4), XCH + 1024 * k))
    endA = [dict(x) for x in e.vm]
    e.wait_lg0()
    e('s_branch %s' % join)
    e.restore(snap)
    e.raw(roleB + ':')
    acc = lambda b: (vO + 4 * b) if b < 4 else (vF + 4 * (b - 4))
    seen = set()
    hs = list(range(SA + 1, 16))
    AF, CR, KB, RB, TT, PP = 48, 64, 68, 108, 140, (164, 176)
    b5, b3a, b3b, b9, b7 = [vBAND + 4 * k for k in range(5)]
    def box(t, A, B): return 'v_mfma_f32_16x16x32_bf16 %s, %s, %s, 0' % (v(TT + 4 * t, 4), v(A, 4), v(B, 4))
    def cvt(t, pp): return 'v_cvt_pk_bf16_f32 %s, %s, %s' % (v(pp + t), v(TT + 2 * t), v(TT + 2 * t + 1))
    steps = []
    def tails(n):
        s1 = []; pp = PP[n & 1]
        for D in range(4):
            if D < 3 and n + 2 + D < 8: s1 += [('mr', n + 2 + D, pp, KB + 4 * D), ('mr', n + 2 + D, pp + 4, KB + 12 + 4 * D)]
            if n < 4 and n + 4 + D < 8: s1.append(('mr', n + 4 + D, pp + 8, KB + 24 + 4 * D))
        return s1
    for n in range(6):
        U16, U24 = ('u', 256 * n - 16), ('u', 256 * n - 24)
        s1 = [('box', 0, U24, b5), ('box', 1, U16, b3a), ('box', 2, U16, b5), ('box', 3, U16, b3b)]
        if n < 4: s1 += [('box', 4, U24, b9), ('box', 5, U16, b7)]
        s2 = [('mm', n + 2, AF + 12, U16)]
        for s in hs: s2.append(('mm', n + 1, AF + 4 * (s - 13), ('u', 32 * (8 * (n + 1) - s) - 16)))
        if n < 5: s2.append(('mm', n + 3, CR, ('u', 256 * (n - 1) - 8)))
        if n == 5:
            for s in hs: s2.append(('mm', 7, AF + 4 * (s - 13), ('u', 32 * (56 - s) - 16)))
        s2 += tails(n - 1) if n > 0 else []
        cv = [('cvt', t, PP[n & 1]) for t in range(12 if n < 4 else 8)]
        body = []
        for k, x in enumerate(s2):
            body.append(x)
            if k >= 1: body += take(cv, 2)
        steps += s1 + body + cv
    steps += tails(5)
    uses = []
    for x in steps:
        for y in x:
            if isinstance(y, tuple) and y not in uses: uses.append(y)
    NR = 8
    reg = {u: RB + 4 * (k % NR) for k, u in enumerate(uses)}
    last = {u: max(k for k, x in enumerate(steps) if u in x) for u in uses}
    put([ub(reg[u], u[1]) for u in uses[:2]])
    pend = rd8(AF + 12, 0) + [x for s in hs for x in rd8(AF + 4 * (s - 13), 512 - 32 * s)] + rd8(CR, T.BC)
    put(take(pend, 4))
    put([ub(reg[u], u[1]) for u in uses[2:6]])
    for k in range(4): e('v_mov_b32 %s, 0' % v(vO + k))
    for D in range(4):
        if D < 3: pend += rd4(KB + 4 * D, T.B0 + 16 * (2 - D)) + rd4(KB + 4 * D + 2, T.B1 + 16 * (2 - D)) + rd4(KB + 12 + 4 * D, T.B2 + 16 * (2 - D)) + rd4(KB + 12 + 4 * D + 2, T.B3 + 16 * (2 - D))
        pend += rd4(KB + 24 + 4 * D, T.B4 + 16 * (3 - D)) + rd4(KB + 24 + 4 * D + 2, T.B5 + 16 * (3 - D))
    nxt = 6
    M = []
    for k, x in enumerate(steps):
        if x[0] == 'cvt': M.append(cvt(x[1], x[2])); continue
        if x[0] == 'box': M.append(box(x[1], reg[x[2]], x[3]))
        elif x[0] == 'mm': M.append(mm(x[1], x[2], reg[x[3]]))
        else: M.append(mm(x[1], x[2], x[3]))
        M += take(pend, 2)
        if nxt < len(uses) and (nxt < NR or last[uses[nxt - NR]] <= k): M.append(ub(reg[uses[nxt]], uses[nxt][1])); nxt += 1
    assert nxt == len(uses) and not pend
    put(spread(M, sum(1 for x in M if x.startswith('v_mfma'))))
    for k in range(4): e('ds_write_b128 %s, %s offset:%d' % (v(vXW), v(vO + 4 * k, 4), XCH + 1024 * k))
    endB = [dict(x) for x in e.vm]
    e.wait_lg0()
    m_ = min(len(endA), len(endB))
    assert m_ == 0 or endA[-m_:] == endB[-m_:]
    e.vm = endA if len(endA) > len(endB) else endB
    e.raw(join + ':')

def conv_finish():
    vF, vO = 16, 32
    e('s_barrier')
    stamp(9)
    for k in range(4): e('ds_read_b128 %s, %s offset:%d' % (v(vO + 4 * k, 4), v(vXR), XCH + 1024 * k))
    for p in range(2):
        X = 48 + 4 * p
        for k in range(4 * p, 4 * p + 4): e('v_pk_add_f32 %s, %s, %s' % (v(vF + 2 * k, 2), v(vF + 2 * k, 2), v(vO + 2 * k, 2)))
        for k in range(4): e('v_cvt_pk_bf16_f32 %s, %s, %s' % (v(X + k), v(vF + 8 * p + 2 * k), v(vF + 8 * p + 2 * k + 1)))
        e('v_permlane16_swap_b32 %s, %s' % (v(X), v(X + 2)))
        e('v_permlane16_swap_b32 %s, %s' % (v(X + 1), v(X + 3)))
        e('buffer_store_dwordx4 %s, %s, %s, s%d offen offset:%d sc1' % (v(X, 4), v(vYO), srd(SWS), sYS, 1024 * p), tag='y')
```

```python
from g2b import *

vA2, vH, vHO, vY = 16, 96, 222, 200
RING = opt('ring', 4)
aH0 = 192
LATE = list(range(64, 70)) + list(range(48, 56))
def split_stash():
    S = stash_loads()
    early = S[:48] + S[56:64]
    def fix(g, idx):
        j = idx // 5
        m = 's_mul_i32 s%d, s%d, 5' % (sS0 + (j & 1), sKS + j)
        return g if isinstance(g[0], str) else [m] + g
    early[48] = fix(early[48], 56)
    late = [S[i] for i in LATE]
    late[0] = fix(late[0], 64); late[6] = fix(late[6], 48)
    return early, late
def hreg(j, tb): return a(aH0 + 16 * j + 4 * tb, 4) if j < 2 else v(vH + 16 * (j % RING) + 4 * tb, 4)
def hl(j): return [('buffer_load_dwordx4 %s, %s, %s, s%d offen sc1' % (hreg(j, tb), v(vHO + tb), srd(SH), sKS + j), 'h%d' % (100 + j)) for tb in range(4)]
FH_LOAD = 'buffer_load_dword %s, %s, %s, s%d offen sc1' % (v(vPL), v(vPA), srd(SWS), sFHP)
def g2_pre():
    A = [mk_srd(SH, P_WS, 4 * 55296, sHLA) + ['v_min_u32 %s, 27, v0' % v(vPA), 'v_lshlrev_b32 %s, 2, %s' % (v(vPA), v(vPA))],
         ['v_add_u32 %s, %d, v1' % (v(vHO + tb), tb * 55296) for tb in range(4)]]
    return A, (FH_LOAD, 'fh'), (lambda: poll(vPL, 1, FH_LOAD, 'fh0')), hl(0) + hl(1)

def gemm2(late):
    acc = lambda db, tb: vA2 + 16 * db + 4 * tb
    stamp(10)
    vFYA, vYA, vRWr = 226, 227, 195
    vGO, vLO = 8, 192
    sFYP, sB2 = sHS0, sHS1
    stream = ['s_add_u32 s%d, s%d, 4096' % (sFHP, sFHP), 's_mul_i32 s%d, s%d, 160' % (sB2, sN80), 's_lshr_b32 s68, s%d, 2' % sXCD, 's_mul_i32 s68, s68, 2560',
              's_lshl_b32 s%d, s%d, 1' % (sFYP, sB2), 's_add_u32 s%d, s%d, s68' % (sFYP, sFYP), 's_add_u32 s%d, s%d, %d' % (sFYP, sFYP, FY), 'v_min_u32 v13, 39, v0', 'v_lshlrev_b32 %s, 3, v13' % v(vFYA),
              'v_and_b32 v13, 15, v0', 'v_lshrrev_b32 v14, 4, v0', 'v_lshlrev_b32 v15, 12, v13', 'v_lshl_add_u32 %s, v14, 4, v15' % v(vYA),
              'v_mul_u32_u24 v13, 336, v13', 'v_lshl_add_u32 v13, v14, 4, v13', 's_mul_i32 s68, s%d, 21504' % sW, 'v_add_u32 %s, s68, v13' % v(vRWr),
              's_mul_i32 s69, s%d, %d' % (sW, 16 * 336)]
    for i in range(3):
        stream += ['v_add_u32 v13, %d, v0' % (64 * i), 'v_mul_u32_u24 v14, 6554, v13', 'v_lshrrev_b32 v14, 16, v14',
                   'v_mul_u32_u24 v15, 10, v14', 'v_sub_u32 v15, v13, v15', 'v_lshl_add_u32 %s, v15, 4, s%d' % (v(5 + i), sB2),
                   'v_mul_u32_u24 v13, 1280, v14', 'v_lshl_add_u32 %s, v15, 4, v13' % v(vGO + i),
                   'v_mul_u32_u24 v13, 336, v14', 'v_lshl_add_u32 v13, v15, 5, v13', 'v_add_u32 %s, s69, v13' % v(vLO + i)]
    stream += sels()
    fy = 'buffer_load_dwordx2 v[2:3], %s, %s, s%d offen sc1' % (v(vFYA), srd(SWS), sFYP)
    yl = ['buffer_load_dwordx4 %s, %s, %s, s%d offen sc1' % (v(vY, 4), v(vYA), srd(SWS), sYA),
          'buffer_load_dwordx4 %s, %s, %s, s%d offen offset:64 sc1' % (v(vY + 4, 4), v(vYA), srd(SWS), sYA),
          'buffer_load_dwordx4 %s, %s, %s, s%d offen sc1' % (v(vY + 8, 4), v(vYA), srd(SWS), sYB)]
    def mf(j, db, tb):
        d = v(acc(db, tb), 4)
        return 'v_mfma_f32_16x16x32_bf16 %s, %s, %s, %s' % (d, stash_reg(j, db), hreg(j, tb), '0' if j == 0 else d)
    NT = opt('nt', 3)
    LA = opt('la', 2)
    assert RING > max(LA, NT) - 0
    xr, br = 160, 172
    assert vH + 16 * RING <= xr
    issued = 2
    jfy, jyc = opt('jfy', 6), opt('jyc', 8)
    for j in range(14 - NT):
        M = [mf(j, db, tb) for tb in range(4) for db in range(5)]
        vm = []
        if j == 1: vm.append([lambda: e.wait_vm('y'), lambda: flag_store(sFY)])
        if j == opt('jh1', 2): vm.append((FH_LOAD, 'fh'))
        if j == 7 - LA: poll(vPL, 1, FH_LOAD, 'fh1')
        hi = min(14, j + LA + 1 + (NT - 1 if j == 13 - NT else 0))
        while issued < hi: vm += hl(issued); issued += 1
        if j == 0: vm += take(late, 0)
        elif j >= 2: vm += take(late, 2)
        if j == jfy: vm.append((fy, 'fy'))
        if j == jyc:
            e('v_and_b32 v2, v2, v3')
            e('v_cmp_ne_u32 s[70:71], 1, v2')
            vm += [(y, 'yl') for y in yl]
        if j == 9: vm += [('buffer_load_dwordx4 %s, %s, %s, s%d offen' % (v(xr + 4 * i, 4), v(vGO + i), srd(SX), sOUT), 'fx') for i in range(3)]
        if j == 10: vm += [('global_load_dwordx4 %s, %s, %s' % (v(br + 4 * i, 4), v(5 + i), sp(P_B2)), 'fb') for i in range(3)]
        put(sched(M, [], [], vm, stream, 2, 2))
        if j in (1, 5): stamp(14 + (j == 5))
    assert not late and not stream and issued == 14, (late, stream, issued)
    stamp(11)
    ok = lab('y_ok')
    e('s_cmp_eq_u64 s[70:71], 0')
    e('s_cbranch_scc1 %s' % ok)
    snap = e.snapshot()
    e.raw('    v_mov_b32 v2, 0')
    poll(2, 2, fy, 'fy')
    for y in yl: e.raw('    ' + y)
    e.raw('    s_waitcnt vmcnt(0)')
    e.restore(snap)
    e.raw(ok + ':')
    e.wait_vm('yl')
    labs = [lab('yv') for _ in range(5)]
    snap = e.snapshot()
    for w in range(4):
        e.restore(snap)
        e.raw(labs[w] + ':')
        if w < 3:
            e('s_cmp_lg_u32 s%d, %d' % (sW, w)); e('s_cbranch_scc1 %s' % labs[w + 1])
        for tb in range(4):
            d = v(acc(w, tb), 4)
            e('v_mfma_f32_16x16x32_bf16 %s, %s, %s, %s' % (d, v(vY + 4 * (tb >> 1), 4), v(vSEL + 4 * (tb & 1), 4), d))
        d = v(acc(4, w), 4)
        e('v_mfma_f32_16x16x32_bf16 %s, %s, %s, %s' % (d, v(vY + 8, 4), v(vSEL + 4 * (w & 1), 4), d))
        if w < 3: e('s_branch %s' % labs[4])
    e.raw(labs[4] + ':')
    e('s_barrier')
    XF = 196
    un = []
    for i in range(3):
        for k in range(4):
            d = XF + 8 * i + 2 * k
            un += ['v_lshlrev_b32 v%d, 16, %s' % (d, v(xr + 4 * i + k)), 'v_and_b32 v%d, 0xffff0000, %s' % (d + 1, v(xr + 4 * i + k)),
                   'v_lshlrev_b32 v13, 16, %s' % v(br + 4 * i + k), 'v_and_b32 v14, 0xffff0000, %s' % v(br + 4 * i + k),
                   'v_add_f32 v%d, v%d, v13' % (d, d), 'v_add_f32 v%d, v%d, v14' % (d + 1, d + 1)]
    prev = []
    for tb in range(4):
        M = [mf(j, db, tb) for j in range(14 - NT, 14) for db in range(5)]
        if tb == 0: put(M[:2]); M = M[2:]
        put(sched(M[:2], [], [], [], un, 2, 2) + sched(M[2:], [], [], prev, un, 2, 2))
        prev = ['ds_write_b128 %s, %s offset:%d' % (v(vRWr), v(acc(db, tb), 4), RED + tb * 5376 + db * 64) for db in range(5)]
    put(un)
    put(prev)
    e.barrier()
    stamp(12)
    PR = 16
    for i in range(3):
        for src in range(4):
            for h in range(2):
                e('ds_read_b128 %s, %s offset:%d' % (v(PR + 32 * i + 8 * src + 4 * h, 4), v(vLO + i), RED + src * 21504 + 16 * h))
    for i in range(3):
        for src in range(4):
            for k in range(4):
                e('v_pk_add_f32 %s, %s, %s' % (v(XF + 8 * i + 2 * k, 2), v(XF + 8 * i + 2 * k, 2), v(PR + 32 * i + 8 * src + 2 * k, 2)))
        for k in range(4): e('v_cvt_pk_bf16_f32 %s, %s, %s' % (v(120 + 4 * i + k), v(XF + 8 * i + 2 * k), v(XF + 8 * i + 2 * k + 1)))
        if i == 2: e('s_mov_b32 exec_hi, 0')
        e('buffer_store_dwordx4 %s, %s, %s, s%d offen' % (v(120 + 4 * i, 4), v(vGO + i), srd(SO), sOUT), tag='out')
    e('s_mov_b32 exec_hi, -1')
    if OPT['stamps']:
        stamp(13)
        e('s_lshl_b32 s68, s2, 2'); e('s_add_u32 s68, s68, s%d' % sW); e('s_lshl_b32 s68, s68, 8'); e('s_add_u32 s68, s68, %d' % STAMP)
        e('v_lshlrev_b32 v13, 2, v0')
        e('buffer_store_dword %s, v13, %s, s68 offen' % (v(vSTAMP), srd(SWS)))

def last_conv_items(stash, fh1):
    A, ld, chk, h = g2_pre()
    n = len(stash); k1 = n * opt('c1', 45) // 100; k2 = n * opt('c2', 70) // 100
    it = take(stash, k1 // 2) + (fh1 or []) + take(stash, k1 - k1 // 2) + A + [ld] + take(stash, k2 - k1)
    rest = take(stash, len(stash))
    return it + rest + [chk] + h

def full_path():
    e('s_add_u32 s%d, s%d, s%d' % (sPAIR, sPAIR, sJ))
    d0, d1, d2 = g1_dma_flat(0), g1_dma_flat(1), g1_dma_flat(2)
    n0 = opt('n0', 4)
    put(d0[:n0])
    stamp(30)
    put(late_setup())
    put(param_loads(sPAIR))
    if not opt('latesc', 0): e(LOAD_B)
    stamp(28)
    put(ln_addr()); put(g1_read_addr()); put(gelu_addr())
    stamp(29)
    if opt('bandpos', 0) == 0: put(bands())
    layernorm(d0[n0:], d1[:5], d1[5:])
    if opt('bandpos', 0) == 1: put(interleave(bands(), d2, 0, 10, 1))
    else: put(d2)
    stamp(1)
    early, late = split_stash()
    gemm1(early)
    gelu(early)
    stamp(6)
    def mid():
        e.wait_vm('h0'); flag_store(sFH); e('s_add_u32 s%d, s%d, 4096' % (sFH, sFH))
    ktail(0, [mid])
    stamp(7)
    fh1 = [[lambda: e.wait_vm('h1'), lambda: flag_store(sFH)]]
    conv(0, take(early, 3), lambda: last_conv_items(early, fh1))
    conv_finish()
    e('s_branch L_gemm2')
    return e.snapshot(), late

def spare_path():
    e.raw('L_spare:')
    e('s_sub_u32 s68, s%d, 28' % sJ); e('s_mul_i32 s69, s68, 3'); e('s_add_u32 s%d, s%d, s69' % (sPAIR, sPAIR)); e('s_add_u32 s%d, s%d, 28' % (sPAIR, sPAIR))
    put(late_setup())
    nc = lab('noclear')
    e('s_cmp_lg_u32 s2, 248'); e('s_cbranch_scc1 %s' % nc)
    r = lambda s: e.raw('    ' + s)
    for k in range(4): r('v_mov_b32 v%d, 0' % (16 + k))
    r('s_lshl_b32 s70, s%d, 12' % sW)
    for k in range(4): r('buffer_store_dwordx4 v[16:19], v1, %s, s70 offen offset:%d sc1' % (srd(SWS), 1024 * k))
    r('s_waitcnt vmcnt(0)'); r('s_barrier'); r('v_mov_b32 v17, 1'); r('s_mov_b64 exec, 1')
    r('global_store_dword v16, v17, %s sc1' % sp(P_DBG)); r('s_mov_b64 exec, -1')
    e.raw(nc + ':')
    e('s_sub_u32 s70, s2, %d' % (224 - 256))
    e('s_mul_i32 s69, s70, 52429'); e('s_lshr_b32 s69, s69, 18'); e('s_mul_i32 s68, s69, 5'); e('s_sub_u32 s68, s70, s68')
    e('s_mul_i32 s69, s69, 40960'); e('s_lshl_b32 s68, s68, 8'); e('s_add_u32 s71, s69, s68')
    e('s_lshl_b32 s68, s%d, 11' % sW)
    put(pack_dma(1))
    PS = (vPAR, 29, 34)
    put(param_loads(sPAIR, vPAR)); e('s_add_u32 s%d, s%d, 1' % (sPAIR, sPAIR))
    put(param_loads(sPAIR, 88)); e('s_add_u32 s%d, s%d, 1' % (sPAIR, sPAIR))
    put(param_loads(sPAIR, 94))
    if not opt('latesc', 0): e(LOAD_B)
    stamp(28)
    put(ln_addr()); put(bands())
    layernorm([], [], [], units=2)
    stamp(1)
    put(conv_addr(KTAB_SP)); put(w2_setup())
    for k in range(6): e('v_lshl_or_b32 v%d, v%d, 16, v%d' % (29 + k, 94 + k, 88 + k))
    e('s_mul_i32 s68, s%d, %d' % (sCH, CHP)); e('s_lshl_b32 s69, s%d, 8' % sO); e('s_add_u32 m0, s68, s69')
    early, late = split_stash()
    for it in range(3):
        if it == 1:
            for k in range(6): e('v_and_b32 %s, 0xffff, v%d' % (v(vPAR + k), 29 + k))
        if it == 2:
            for k in range(6): e('v_lshrrev_b32 %s, 16, v%d' % (v(vPAR + k), 29 + k))
        put(kgen_setup(True))
        rows = kgen_rows(True, lambda r: ['ds_write_addtid_b32 %s offset:%d' % (v(vKV + r), r * 528)])
        if it == 2:
            poll(212, 4, FAALL_LOAD, 'faall')
            rows = interleave(rows, take(early, opt('spk', 10)), 4, 20, 1)
        put(rows)
        if it == 0: e.wait_vm('u')
        e.barrier()
        if it == 0: fa_publish()
        ktail(3072 * it, [(FAALL_LOAD, 'faall')] if it == 1 else (u_loads() if it == 2 else []))
        if it < 2: e.barrier()
        stamp(3 + it)
    stamp(7)
    for it in range(3):
        def nxt():
            L = take(early, opt('spc', 18))
            L = L[:2] + [['s_add_u32 s%d, s%d, 32' % (sUL0, sUL0), 's_add_u32 s%d, s%d, 32' % (sUL1, sUL1)]] + L[2:]
            if it: L = L[:6] + [[lambda: e.wait_vm('y'), lambda: flag_store(sFY), 's_add_u32 s%d, s%d, 8' % (sFY, sFY)]] + L[6:]
            return L
        def lastc():
            return last_conv_items(early, [[lambda: e.wait_vm('y'), lambda: flag_store(sFY), 's_add_u32 s%d, s%d, 8' % (sFY, sFY)]])
        conv(3072 * it, [], nxt if it < 2 else lastc, zero_pad=(it == 0))
        if it < 2: put(u_loads())
        conv_finish()
        if it < 2: e('s_add_u32 s%d, s%d, 8192' % (sYS, sYS))
    return e.snapshot()

def main():
    prologue()
    e('s_cmp_ge_u32 s%d, 28' % sJ)
    e('s_cbranch_scc1 L_spare')
    snap = e.snapshot()
    sf, late = full_path()
    e.restore(snap)
    ss = spare_path()
    m_ = min(len(sf[0]), len(ss[0]))
    k = 0
    while k < m_ and sf[0][-1 - k] == ss[0][-1 - k]: k += 1
    assert k >= 10, k
    allregs = set()
    for x in sf[0][:len(sf[0]) - k] + ss[0][:len(ss[0]) - k]: allregs |= x['regs']
    e.vm = [dict(regs=allregs, tag='old', opt=True)] + sf[0][len(sf[0]) - k:]
    e.raw('L_gemm2:')
    gemm2(late)
    e.raw('L_end:')
    e('s_endpgm')
    hdr = open('parallel_sum__ssm_conv_s4d__mixer_channel_mlp__prompt.s.ref').read().split('; Override launch')[0]
    s = hdr + '; @launch grid=(256,1,1) block=(256,1,1) lds=%d\n' % LDS_BYTES
    s += '.amdgcn_target "amdgcn-amd-amdhsa--gfx950"\n.text\n.globl %s\n.p2align 8\n.type %s,@function\n%s:\n' % (KN, KN, KN)
    s += e.text()
    s += '.p2align 7\n.type L_tab,@object\nL_tab:\n'
    tab = T.gather_table()
    for k in range(0, len(tab), 8): s += '.long ' + ', '.join('0x%08x' % x for x in tab[k:k + 8]) + '\n'
    s += 'L_tab_end:\n.size L_tab, L_tab_end-L_tab\n.p2align 7\n.type L_sc,@object\nL_sc:\n'
    tab = scalar_table()
    for k in range(0, len(tab), 16): s += '.long ' + ','.join('%d' % x for x in tab[k:k + 16]) + '\n'
    s += 'L_sc_end:\n.size L_sc, L_sc_end-L_sc\n'
    s += '''.section .rodata,"a"
.p2align 6
.amdhsa_kernel %s
  .amdhsa_next_free_vgpr 512
  .amdhsa_next_free_sgpr 102
  .amdhsa_accum_offset 256
  .amdhsa_group_segment_fixed_size 0
  .amdhsa_kernarg_size 120
  .amdhsa_user_sgpr_count 2
  .amdhsa_user_sgpr_kernarg_segment_ptr 1
  .amdhsa_system_sgpr_workgroup_id_x 1
  .amdhsa_float_denorm_mode_32 3
.end_amdhsa_kernel
''' % KN
    open(sys.argv[1], 'w').write(s)
    print('instructions', e.nins, 'nops', e.nnop)

main()
```

```python
from g2b import *

vA2, vH, vHO, vY = 16, 96, 222, 200
RING = opt('ring', 4)
aH0 = 192
LATE = list(range(64, 70)) + list(range(48, 56))
def split_stash():
    S = stash_loads()
    early = S[:48] + S[56:64]
    def fix(g, idx):
        j = idx // 5
        m = 's_mul_i32 s%d, s%d, 5' % (sS0 + (j & 1), sKS + j)
        return g if isinstance(g[0], str) else [m] + g
    early[48] = fix(early[48], 56)
    late = [S[i] for i in LATE]
    late[0] = fix(late[0], 64); late[6] = fix(late[6], 48)
    return early, late
def hreg(j, tb): return a(aH0 + 16 * j + 4 * tb, 4) if j < 2 else v(vH + 16 * (j % RING) + 4 * tb, 4)
def hl(j): return [('buffer_load_dwordx4 %s, %s, %s, s%d offen sc1' % (hreg(j, tb), v(vHO + tb), srd(SH), sKS + j), 'h%d' % (100 + j)) for tb in range(4)]
FH_LOAD = 'buffer_load_dword %s, %s, %s, s%d offen sc1' % (v(vPL), v(vPA), srd(SWS), sFHP)
def g2_pre():
    A = [mk_srd(SH, P_WS, 4 * 55296, sHLA) + ['v_min_u32 %s, 27, v0' % v(vPA), 'v_lshlrev_b32 %s, 2, %s' % (v(vPA), v(vPA))],
         ['v_add_u32 %s, %d, v1' % (v(vHO + tb), tb * 55296) for tb in range(4)]]
    return A, (FH_LOAD, 'fh'), (lambda: poll(vPL, 1, FH_LOAD, 'fh0')), hl(0) + hl(1)

def gemm2(late):
    acc = lambda db, tb: vA2 + 16 * db + 4 * tb
    stamp(10)
    vFYA, vYA, vRWr = 226, 227, 195
    vGO, vLO = 8, 192
    sFYP, sB2 = sHS0, sHS1
    stream = ['s_add_u32 s%d, s%d, 4096' % (sFHP, sFHP), 's_mul_i32 s%d, s%d, 160' % (sB2, sN80), 's_lshr_b32 s68, s%d, 2' % sXCD, 's_mul_i32 s68, s68, 2560',
              's_lshl_b32 s%d, s%d, 1' % (sFYP, sB2), 's_add_u32 s%d, s%d, s68' % (sFYP, sFYP), 's_add_u32 s%d, s%d, %d' % (sFYP, sFYP, FY), 'v_min_u32 v13, 39, v0', 'v_lshlrev_b32 %s, 3, v13' % v(vFYA),
              'v_and_b32 v13, 15, v0', 'v_lshrrev_b32 v14, 4, v0', 'v_lshlrev_b32 v15, 12, v13', 'v_lshl_add_u32 %s, v14, 4, v15' % v(vYA),
              'v_mul_u32_u24 v13, 336, v13', 'v_lshl_add_u32 v13, v14, 4, v13', 's_mul_i32 s68, s%d, 21504' % sW, 'v_add_u32 %s, s68, v13' % v(vRWr),
              's_mul_i32 s69, s%d, %d' % (sW, 16 * 336)]
    for i in range(3):
        stream += ['v_add_u32 v13, %d, v0' % (64 * i), 'v_mul_u32_u24 v14, 6554, v13', 'v_lshrrev_b32 v14, 16, v14',
                   'v_mul_u32_u24 v15, 10, v14', 'v_sub_u32 v15, v13, v15', 'v_lshl_add_u32 %s, v15, 4, s%d' % (v(5 + i), sB2),
                   'v_mul_u32_u24 v13, 1280, v14', 'v_lshl_add_u32 %s, v15, 4, v13' % v(vGO + i),
                   'v_mul_u32_u24 v13, 336, v14', 'v_lshl_add_u32 v13, v15, 5, v13', 'v_add_u32 %s, s69, v13' % v(vLO + i)]
    stream += sels()
    fy = 'buffer_load_dwordx2 v[2:3], %s, %s, s%d offen sc1' % (v(vFYA), srd(SWS), sFYP)
    yl = ['buffer_load_dwordx4 %s, %s, %s, s%d offen sc1' % (v(vY, 4), v(vYA), srd(SWS), sYA),
          'buffer_load_dwordx4 %s, %s, %s, s%d offen offset:64 sc1' % (v(vY + 4, 4), v(vYA), srd(SWS), sYA),
          'buffer_load_dwordx4 %s, %s, %s, s%d offen sc1' % (v(vY + 8, 4), v(vYA), srd(SWS), sYB)]
    def mf(j, db, tb):
        d = v(acc(db, tb), 4)
        return 'v_mfma_f32_16x16x32_bf16 %s, %s, %s, %s' % (d, stash_reg(j, db), hreg(j, tb), '0' if j == 0 else d)
    NT = opt('nt', 3)
    LA = opt('la', 2)
    assert RING > max(LA, NT) - 0
    xr, br = 160, 172
    assert vH + 16 * RING <= xr
    issued = 2
    jfy, jyc = opt('jfy', 6), opt('jyc', 8)
    for j in range(14 - NT):
        M = [mf(j, db, tb) for tb in range(4) for db in range(5)]
        vm = []
        if j == 1: vm.append([lambda: e.wait_vm('y'), lambda: flag_store(sFY)])
        if j == opt('jh1', 2): vm.append((FH_LOAD, 'fh'))
        if j == 7 - LA: poll(vPL, 1, FH_LOAD, 'fh1')
        hi = min(14, j + LA + 1 + (NT - 1 if j == 13 - NT else 0))
        while issued < hi: vm += hl(issued); issued += 1
        if j == 0: vm += take(late, 0)
        elif j >= 2: vm += take(late, 2)
        if j == jfy: vm.append((fy, 'fy'))
        if j == jyc:
            e('v_and_b32 v2, v2, v3')
            e('v_cmp_ne_u32 s[70:71], 1, v2')
            vm += [(y, 'yl') for y in yl]
        if j == 9: vm += [('buffer_load_dwordx4 %s, %s, %s, s%d offen' % (v(xr + 4 * i, 4), v(vGO + i), srd(SX), sOUT), 'fx') for i in range(3)]
        if j == 10: vm += [('global_load_dwordx4 %s, %s, %s' % (v(br + 4 * i, 4), v(5 + i), sp(P_B2)), 'fb') for i in range(3)]
        put(sched(M, [], [], vm, stream, 2, 2))
        if j in (1, 5): stamp(14 + (j == 5))
    assert not late and not stream and issued == 14, (late, stream, issued)
    stamp(11)
    ok = lab('y_ok')
    e('s_cmp_eq_u64 s[70:71], 0')
    e('s_cbranch_scc1 %s' % ok)
    snap = e.snapshot()
    e.raw('    v_mov_b32 v2, 0')
    poll(2, 2, fy, 'fy')
    for y in yl: e.raw('    ' + y)
    e.raw('    s_waitcnt vmcnt(0)')
    e.restore(snap)
    e.raw(ok + ':')
    e.wait_vm('yl')
    labs = [lab('yv') for _ in range(5)]
    snap = e.snapshot()
    for w in range(4):
        e.restore(snap)
        e.raw(labs[w] + ':')
        if w < 3:
            e('s_cmp_lg_u32 s%d, %d' % (sW, w)); e('s_cbranch_scc1 %s' % labs[w + 1])
        for tb in range(4):
            d = v(acc(w, tb), 4)
            e('v_mfma_f32_16x16x32_bf16 %s, %s, %s, %s' % (d, v(vY + 4 * (tb >> 1), 4), v(vSEL + 4 * (tb & 1), 4), d))
        d = v(acc(4, w), 4)
        e('v_mfma_f32_16x16x32_bf16 %s, %s, %s, %s' % (d, v(vY + 8, 4), v(vSEL + 4 * (w & 1), 4), d))
        if w < 3: e('s_branch %s' % labs[4])
    e.raw(labs[4] + ':')
    e('s_barrier')
    XF = 196
    un = []
    for i in range(3):
        for k in range(4):
            d = XF + 8 * i + 2 * k
            un += ['v_lshlrev_b32 v%d, 16, %s' % (d, v(xr + 4 * i + k)), 'v_and_b32 v%d, 0xffff0000, %s' % (d + 1, v(xr + 4 * i + k)),
                   'v_lshlrev_b32 v13, 16, %s' % v(br + 4 * i + k), 'v_and_b32 v14, 0xffff0000, %s' % v(br + 4 * i + k),
                   'v_add_f32 v%d, v%d, v13' % (d, d), 'v_add_f32 v%d, v%d, v14' % (d + 1, d + 1)]
    prev = []
    for tb in range(4):
        M = [mf(j, db, tb) for j in range(14 - NT, 14) for db in range(5)]
        if tb == 0: put(M[:2]); M = M[2:]
        put(sched(M[:2], [], [], [], un, 2, 2) + sched(M[2:], [], [], prev, un, 2, 2))
        prev = ['ds_write_b128 %s, %s offset:%d' % (v(vRWr), v(acc(db, tb), 4), RED + tb * 5376 + db * 64) for db in range(5)]
    put(un)
    put(prev)
    e.barrier()
    stamp(12)
    PR = 16
    for i in range(3):
        for src in range(4):
            for h in range(2):
                e('ds_read_b128 %s, %s offset:%d' % (v(PR + 32 * i + 8 * src + 4 * h, 4), v(vLO + i), RED + src * 21504 + 16 * h))
    for i in range(3):
        for src in range(4):
            for k in range(4):
                e('v_pk_add_f32 %s, %s, %s' % (v(XF + 8 * i + 2 * k, 2), v(XF + 8 * i + 2 * k, 2), v(PR + 32 * i + 8 * src + 2 * k, 2)))
        for k in range(4): e('v_cvt_pk_bf16_f32 %s, %s, %s' % (v(120 + 4 * i + k), v(XF + 8 * i + 2 * k), v(XF + 8 * i + 2 * k + 1)))
        if i == 2: e('s_mov_b32 exec_hi, 0')
        e('buffer_store_dwordx4 %s, %s, %s, s%d offen' % (v(120 + 4 * i, 4), v(vGO + i), srd(SO), sOUT), tag='out')
    e('s_mov_b32 exec_hi, -1')
    if OPT['stamps']:
        stamp(13)
        e('s_lshl_b32 s68, s2, 2'); e('s_add_u32 s68, s68, s%d' % sW); e('s_lshl_b32 s68, s68, 8'); e('s_add_u32 s68, s68, %d' % STAMP)
        e('v_lshlrev_b32 v13, 2, v0')
        e('buffer_store_dword %s, v13, %s, s68 offen' % (v(vSTAMP), srd(SWS)))
        if opt('dbg', 0):
            e('v_readlane_b32 s68, %s, 0' % v(vSTAMP)); e('s_not_b32 s68, s68'); e('v_mov_b32 v14, s68'); e('v_mov_b32 v15, s%d' % sST)
            e('v_mov_b32 v13, 8'); e('s_mov_b64 exec, 1')
            e('global_atomic_umax v13, v14, %s' % sp(P_DBG)); e('global_atomic_umax v13, v15, %s offset:4' % sp(P_DBG))
            e('s_lshl_b32 s68, s2, 2'); e('s_add_u32 s68, s68, s%d' % sW); e('s_cmp_eq_u32 s68, %d' % (4 * opt('dbg', 0)))
            e('s_cselect_b64 exec, 0x3fff, 0'); e('v_lshlrev_b32 v13, 2, v0')
            e('s_cbranch_execz L_end')
            e('s_mov_b64 exec, 0x3ffc'); e('global_store_dword v13, %s, %s offset:8' % (v(vSTAMP), sp(P_DBG)))

def last_conv_items(stash, fh1):
    A, ld, chk, h = g2_pre()
    n = len(stash); k1 = n * opt('c1', 45) // 100; k2 = n * opt('c2', 70) // 100
    it = take(stash, k1 // 2) + (fh1 or []) + take(stash, k1 - k1 // 2) + A + [ld] + take(stash, k2 - k1)
    rest = take(stash, len(stash))
    return it + rest + [chk] + h

def full_path():
    e('s_add_u32 s%d, s%d, s%d' % (sPAIR, sPAIR, sJ))
    d0, d1, d2 = g1_dma_flat(0), g1_dma_flat(1), g1_dma_flat(2)
    n0 = opt('n0', 4)
    put(d0[:n0])
    stamp(30)
    put(late_setup())
    put(param_loads(sPAIR))
    if not opt('latesc', 0): e(LOAD_B)
    stamp(28)
    put(ln_addr()); put(g1_read_addr()); put(gelu_addr())
    stamp(29)
    if opt('bandpos', 0) == 0: put(bands())
    layernorm(d0[n0:], d1[:5], d1[5:])
    if opt('bandpos', 0) == 1: put(interleave(bands(), d2, 0, 10, 1))
    else: put(d2)
    stamp(1)
    early, late = split_stash()
    gemm1(early)
    gelu(early)
    stamp(6)
    def mid():
        e.wait_vm('h0'); flag_store(sFH); e('s_add_u32 s%d, s%d, 4096' % (sFH, sFH))
    ktail(0, [mid])
    stamp(7)
    fh1 = [[lambda: e.wait_vm('h1'), lambda: flag_store(sFH)]]
    conv(0, take(early, 3), lambda: last_conv_items(early, fh1))
    conv_finish()
    e('s_branch L_gemm2')
    return e.snapshot(), late

def spare_path():
    e.raw('L_spare:')
    e('s_sub_u32 s68, s%d, 28' % sJ); e('s_mul_i32 s69, s68, 3'); e('s_add_u32 s%d, s%d, s69' % (sPAIR, sPAIR)); e('s_add_u32 s%d, s%d, 28' % (sPAIR, sPAIR))
    put(late_setup())
    nc = lab('noclear')
    e('s_cmp_lg_u32 s2, 248'); e('s_cbranch_scc1 %s' % nc)
    r = lambda s: e.raw('    ' + s)
    for k in range(4): r('v_mov_b32 v%d, 0' % (16 + k))
    r('s_lshl_b32 s70, s%d, 12' % sW)
    for k in range(4): r('buffer_store_dwordx4 v[16:19], v1, %s, s70 offen offset:%d sc1' % (srd(SWS), 1024 * k))
    r('s_waitcnt vmcnt(0)'); r('s_barrier'); r('v_mov_b32 v17, 1'); r('s_mov_b64 exec, 1')
    r('global_store_dword v16, v17, %s sc1' % sp(P_DBG)); r('s_mov_b64 exec, -1')
    e.raw(nc + ':')
    e('s_sub_u32 s70, s2, %d' % (224 - 256))
    e('s_mul_i32 s69, s70, 52429'); e('s_lshr_b32 s69, s69, 18'); e('s_mul_i32 s68, s69, 5'); e('s_sub_u32 s68, s70, s68')
    e('s_mul_i32 s69, s69, 40960'); e('s_lshl_b32 s68, s68, 8'); e('s_add_u32 s71, s69, s68')
    e('s_lshl_b32 s68, s%d, 11' % sW)
    put(pack_dma(1))
    PS = (vPAR, 29, 34)
    put(param_loads(sPAIR, vPAR)); e('s_add_u32 s%d, s%d, 1' % (sPAIR, sPAIR))
    put(param_loads(sPAIR, 88)); e('s_add_u32 s%d, s%d, 1' % (sPAIR, sPAIR))
    put(param_loads(sPAIR, 94))
    if not opt('latesc', 0): e(LOAD_B)
    stamp(28)
    put(ln_addr()); put(bands())
    layernorm([], [], [], units=2)
    stamp(1)
    put(conv_addr(KTAB_SP)); put(w2_setup())
    for k in range(6): e('v_lshl_or_b32 v%d, v%d, 16, v%d' % (29 + k, 94 + k, 88 + k))
    e('s_mul_i32 s68, s%d, %d' % (sCH, CHP)); e('s_lshl_b32 s69, s%d, 8' % sO); e('s_add_u32 m0, s68, s69')
    early, late = split_stash()
    for it in range(3):
        if it == 1:
            for k in range(6): e('v_and_b32 %s, 0xffff, v%d' % (v(vPAR + k), 29 + k))
        if it == 2:
            for k in range(6): e('v_lshrrev_b32 %s, 16, v%d' % (v(vPAR + k), 29 + k))
        put(kgen_setup(True))
        rows = kgen_rows(True, lambda r: ['ds_write_addtid_b32 %s offset:%d' % (v(vKV + r), r * 528)])
        if it == 2:
            poll(212, 4, FAALL_LOAD, 'faall')
            rows = interleave(rows, take(early, opt('spk', 10)), 4, 20, 1)
        put(rows)
        if it == 0: e.wait_vm('u')
        e.barrier()
        if it == 0: fa_publish()
        ktail(3072 * it, [(FAALL_LOAD, 'faall')] if it == 1 else (u_loads() if it == 2 else []))
        if it < 2: e.barrier()
        stamp(3 + it)
    stamp(7)
    for it in range(3):
        def nxt():
            L = take(early, opt('spc', 18))
            L = L[:2] + [['s_add_u32 s%d, s%d, 32' % (sUL0, sUL0), 's_add_u32 s%d, s%d, 32' % (sUL1, sUL1)]] + L[2:]
            if it: L = L[:6] + [[lambda: e.wait_vm('y'), lambda: flag_store(sFY), 's_add_u32 s%d, s%d, 8' % (sFY, sFY)]] + L[6:]
            return L
        def lastc():
            return last_conv_items(early, [[lambda: e.wait_vm('y'), lambda: flag_store(sFY), 's_add_u32 s%d, s%d, 8' % (sFY, sFY)]])
        conv(3072 * it, [], nxt if it < 2 else lastc, zero_pad=(it == 0))
        if it < 2: put(u_loads())
        conv_finish()
        if it < 2: e('s_add_u32 s%d, s%d, 8192' % (sYS, sYS))
    return e.snapshot()

def main():
    prologue()
    e('s_cmp_ge_u32 s%d, 28' % sJ)
    e('s_cbranch_scc1 L_spare')
    snap = e.snapshot()
    sf, late = full_path()
    e.restore(snap)
    ss = spare_path()
    m_ = min(len(sf[0]), len(ss[0]))
    k = 0
    while k < m_ and sf[0][-1 - k] == ss[0][-1 - k]: k += 1
    assert k >= 10, k
    allregs = set()
    for x in sf[0][:len(sf[0]) - k] + ss[0][:len(ss[0]) - k]: allregs |= x['regs']
    e.vm = [dict(regs=allregs, tag='old', opt=True)] + sf[0][len(sf[0]) - k:]
    e.raw('L_gemm2:')
    gemm2(late)
    e.raw('L_end:')
    e('s_endpgm')
    hdr = open('parallel_sum__ssm_conv_s4d__mixer_channel_mlp__prompt.s.ref').read().split('; Override launch')[0]
    s = hdr + '; @launch grid=(256,1,1) block=(256,1,1) lds=%d\n' % LDS_BYTES
    s += '.amdgcn_target "amdgcn-amd-amdhsa--gfx950"\n.text\n.globl %s\n.p2align 8\n.type %s,@function\n%s:\n' % (KN, KN, KN)
    s += e.text()
    s += '.p2align 7\n.type L_tab,@object\nL_tab:\n'
    tab = T.gather_table()
    for k in range(0, len(tab), 8): s += '.long ' + ', '.join('0x%08x' % x for x in tab[k:k + 8]) + '\n'
    s += 'L_tab_end:\n.size L_tab, L_tab_end-L_tab\n.p2align 7\n.type L_sc,@object\nL_sc:\n'
    tab = scalar_table()
    for k in range(0, len(tab), 16): s += '.long ' + ','.join('%d' % x for x in tab[k:k + 16]) + '\n'
    s += 'L_sc_end:\n.size L_sc, L_sc_end-L_sc\n'
    s += '''.section .rodata,"a"
.p2align 6
.amdhsa_kernel %s
  .amdhsa_next_free_vgpr 512
  .amdhsa_next_free_sgpr 102
  .amdhsa_accum_offset 256
  .amdhsa_group_segment_fixed_size 0
  .amdhsa_kernarg_size 120
  .amdhsa_user_sgpr_count 2
  .amdhsa_user_sgpr_kernarg_segment_ptr 1
  .amdhsa_system_sgpr_workgroup_id_x 1
  .amdhsa_float_denorm_mode_32 3
.end_amdhsa_kernel
''' % KN
    open(sys.argv[1], 'w').write(s)
    print('instructions', e.nins, 'nops', e.nnop)

main()
```

```python
import re

TRANS = ('v_exp_f32', 'v_log_f32', 'v_rcp_f32', 'v_rsq_f32', 'v_sqrt_f32', 'v_sin_f32', 'v_cos_f32')
REG = re.compile(r'(?<![\w.])([vas])(?:(\d+)|\[(\d+):(\d+)\])(?![\w])')

def regs_of(tok):
    out = []
    for m in REG.finditer(tok):
        k = m.group(1)
        if m.group(2) is not None: out.append((k, int(m.group(2))))
        else: out += [(k, i) for i in range(int(m.group(3)), int(m.group(4)) + 1)]
    for sp in ('vcc', 'exec', 'm0'):
        if re.search(r'(?<![\w])' + sp + r'(?![\w])', tok): out.append(('x', sp))
    for sp in ('vcc_lo', 'vcc_hi'):
        if sp in tok: out.append(('x', 'vcc'))
    for sp in ('exec_lo', 'exec_hi'):
        if sp in tok: out.append(('x', 'exec'))
    return out

def split_ops(s):
    out, depth, cur = [], 0, ''
    for ch in s:
        if ch == '[': depth += 1
        if ch == ']': depth -= 1
        if ch == ',' and depth == 0:
            out.append(cur.strip()); cur = ''
        else: cur += ch
    if cur.strip(): out.append(cur.strip())
    return out

class Ins:
    def __init__(self, text):
        self.text = text
        t = text.split(';')[0].strip()
        sp = t.split(None, 1)
        self.op = op = sp[0]
        rest = sp[1] if len(sp) > 1 else ''
        ops = split_ops(rest)
        self.mods = ''
        if ops:
            parts = ops[-1].split(None, 1)
            ops[-1] = parts[0]
            self.mods = parts[1] if len(parts) > 1 else ''
        self.ops = ops
        base = re.sub(r'_(e32|e64|dpp|sdwa)$', '', op)
        self.base = base
        R = [regs_of(o) for o in ops]
        self.w, self.r = [], []
        self.kind = 'other'
        if op.startswith('v_mfma'):
            self.kind = 'mfma'; self.w = R[0]; self.a = R[1]; self.b = R[2]; self.c = R[3]; self.r = R[1] + R[2] + R[3]
            self.passes = 8 if '32x32' in op else 4
        elif op.startswith('v_'):
            self.kind = 'valu'
            if base.startswith('v_cmp'):
                self.w = R[0]; self.r = sum(R[1:], [])
                if base.startswith('v_cmpx'): self.w = self.w + [('x', 'exec')]
            elif base.startswith('v_permlane') and 'swap' in base:
                self.w = R[0] + R[1]; self.r = R[0] + R[1]
            elif base in ('v_add_co_u32', 'v_sub_co_u32', 'v_addc_co_u32', 'v_subb_co_u32'):
                self.w = R[0] + R[1]; self.r = sum(R[2:], [])
            else:
                self.w = R[0]; self.r = sum(R[1:], [])
                if base in ('v_fmac_f32', 'v_dot2c_f32_bf16', 'v_writelane_b32') or 'row_' in self.mods or 'quad_perm' in self.mods or 'wave_' in self.mods:
                    self.r = self.r + R[0]
                if base == 'v_cndmask_b32' and len(ops) == 3: self.r.append(('x', 'vcc'))
            self.trans = base in TRANS
            self.dpp = ('row_' in self.mods or 'quad_perm' in self.mods or 'wave_' in self.mods)
        elif op.startswith('ds_'):
            self.kind = 'ds'
            if op.startswith('ds_read') or op.startswith('ds_bpermute') or op.startswith('ds_swizzle'):
                self.w = R[0]; self.r = sum(R[1:], [])
            else: self.r = sum(R, [])
        elif op.startswith('buffer_') or op.startswith('global_'):
            self.kind = 'vmem'
            self.lds = bool(re.search(r'(?<![\w])lds(?![\w])', self.mods)) or '_lds_' in op
            self.store = '_store' in op or '_atomic' in op
            if self.lds: self.r = sum(R, []) + [('x', 'm0')]
            elif self.store: self.r = sum(R, [])
            else: self.w = R[0]; self.r = sum(R[1:], [])
            if self.store:
                self.data = R[0] if op.startswith('buffer_') else R[1]
        elif op.startswith('s_load') or op.startswith('s_memtime') or op.startswith('s_memrealtime') or op.startswith('s_buffer_load'):
            self.kind = 'smem'; self.w = R[0]; self.r = sum(R[1:], [])
        elif op.startswith('s_'):
            self.kind = 'salu'
            if op.startswith('s_cmp') or op.startswith('s_bitcmp') or op in ('s_waitcnt', 's_nop', 's_barrier', 's_branch', 's_endpgm', 's_sleep', 's_setprio') or op.startswith('s_cbranch'):
                self.r = sum(R, [])
            else:
                self.w = R[0] if R else []; self.r = sum(R[1:], [])
                if 'saveexec' in op: self.w = self.w + [('x', 'exec')]; self.r = self.r + [('x', 'exec')]
                if op.startswith('s_cmov') or op in ('s_addk_i32', 's_mulk_i32'): self.r = self.r + R[0]
        self.ws, self.rs = set(self.w), set(self.r)

def states(ins):
    if ins.op == 's_nop': return int(ins.ops[0], 0) + 1
    return 1

class Emit:
    def __init__(self):
        self.out = []
        self.hist = []
        self.vm = []
        self.lg = []
        self.nins = 0
        self.nnop = 0
        self.defd = {('s', 0), ('s', 1), ('s', 2), ('v', 0)}
        self.lastw = {}
    def raw(self, s):
        self.out.append(s)
    def comment(self, s):
        self.out.append('; ' + s)
    def label(self, name):
        self.out.append(name + ':')
    def _put(self, ins):
        self.out.append('    ' + ins.text)
        self.hist.append(ins)
        if len(self.hist) > 24: self.hist.pop(0)
        self.nins += 1
    def need(self, ins):
        req = 0; dist = 0
        for p in reversed(self.hist):
            n = 0
            if p.kind == 'mfma':
                big = 12 if p.passes == 8 else 8
                if ins.kind == 'mfma':
                    if p.ws & (set(ins.a) | set(ins.b)): n = big
                    elif p.ws & set(ins.c) and not (p.w == ins.c and p.passes == ins.passes): n = big - 2
                    elif p.ws & ins.ws and p.w != ins.w: n = big - 2
                elif ins.kind in ('valu', 'ds', 'vmem'):
                    if p.ws & (ins.rs | ins.ws): n = big
                    elif ins.kind == 'valu' and set(p.c) & ins.ws: n = 7 if p.passes == 8 else 3
            elif p.kind == 'valu':
                vw = {r for r in p.ws if r[0] in 'va'}
                sw = {r for r in p.ws if r[0] == 's' or r == ('x', 'vcc')}
                if ins.kind == 'mfma' and vw & ins.rs: n = 2
                if ins.kind == 'mfma' and ('x', 'exec') in p.ws: n = 4
                if ins.kind == 'valu':
                    if p.trans and not ins.trans and vw & ins.rs: n = max(n, 1)
                    if p.trans and ins.trans and vw & ins.rs: n = max(n, 1)
                    if ins.dpp and vw & ins.rs: n = max(n, 2)
                    if ins.base.startswith('v_permlane') and vw & ins.rs: n = max(n, 2)
                    if ins.base in ('v_readlane_b32', 'v_readfirstlane_b32') and vw & ins.rs: n = max(n, 1)
                    if sw & ins.rs: n = max(n, 4 if ins.base in ('v_readlane_b32', 'v_writelane_b32') else 2)
                    if ('x', 'exec') in p.ws: n = max(n, 5)
                if ins.kind == 'vmem' and sw & ins.rs: n = max(n, 5)
                if ins.kind in ('salu', 'smem') and sw & ins.rs: n = max(n, 1)
            elif p.kind == 'salu':
                if ('x', 'm0') in p.ws and ins.kind == 'vmem' and ins.lds: n = 1
            elif p.kind == 'vmem':
                if p.store and len(p.data) > 2 and set(p.data) & ins.ws: n = 2
            req = max(req, n - dist)
            dist += states(p)
            if dist >= 14: break
        return req
    def _wait(self, vm=None, lg=None):
        s = 's_waitcnt'
        if vm is not None: s += ' vmcnt(%d)' % vm
        if lg is not None: s += ' lgkmcnt(%d)' % lg
        self._put(Ins(s))
    def _vm_drop(self, idx):
        n = sum(1 for e in self.vm[idx + 1:] if not e['opt'])
        assert n <= 63
        self.vm = self.vm[idx + 1:]
        return n
    def _lg_drop(self, idx):
        if any(e['smem'] for e in self.lg):
            self.lg = []; return 0
        n = len(self.lg) - idx - 1
        n = min(n, 15)
        self.lg = self.lg[len(self.lg) - n:] if n else []
        return n
    def __call__(self, text, tag=None, opt=False):
        for line in text.split('\n'):
            line = line.strip()
            if not line: continue
            if line.startswith(';'): self.out.append(line); continue
            if line.endswith(':') and ' ' not in line: self.label(line[:-1]); continue
            self.one(line, tag, opt)
    def one(self, line, tag=None, opt=False):
        ins = Ins(line)
        und = [r for r in ins.rs if r[0] in 'vas' and r not in self.defd and not (ins.base == 'v_writelane_b32' and r in ins.ws)]
        if und: print('UNDEFINED', sorted(und), line)
        self.defd |= ins.ws
        touch = ins.rs | ins.ws
        vi = max([i for i, e in enumerate(self.vm) if e['regs'] & touch], default=-1)
        li = max([i for i, e in enumerate(self.lg) if e['regs'] & touch], default=-1)
        if vi >= 0 or li >= 0:
            self._wait(self._vm_drop(vi) if vi >= 0 else None, self._lg_drop(li) if li >= 0 else None)
        n = self.need(ins)
        while n > 0:
            k = min(n, 16)
            self._put(Ins('s_nop %d' % (k - 1))); n -= k; self.nnop += 1
        if ins.kind == 'vmem':
            if len(self.vm) >= 63:
                self._wait(self._vm_drop(len(self.vm) - 63 + 0), None)
            self.vm.append(dict(regs=set(ins.ws), tag=tag, opt=opt))
        elif ins.kind == 'ds':
            self.lg.append(dict(regs=set(ins.ws), smem=False))
        elif ins.kind == 'smem':
            self.lg.append(dict(regs=set(ins.ws), smem=True))
        elif ins.op == 's_waitcnt':
            m = re.search(r'vmcnt\((\d+)\)', line)
            if m:
                k = int(m.group(1));
                if k == 0: self.vm = []
                else: raise ValueError('use wait_vm')
            m = re.search(r'lgkmcnt\((\d+)\)', line)
            if m:
                if int(m.group(1)) == 0: self.lg = []
                else: raise ValueError('use wait_lg')
        self._put(ins)
    def wait_vm(self, tag, lg0=False):
        tags = tag if isinstance(tag, (tuple, list)) else (tag,)
        vi = max([i for i, e in enumerate(self.vm) if e['tag'] in tags], default=-1)
        lg = None
        if lg0 and self.lg: lg = 0; self.lg = []
        if vi >= 0 or lg is not None:
            self._wait(self._vm_drop(vi) if vi >= 0 else None, lg)
    def wait_lg0(self):
        if self.lg:
            self.lg = []; self._wait(None, 0)
    def barrier(self):
        self.wait_lg0()
        self('s_barrier')
    def snapshot(self):
        return ([dict(e) for e in self.vm], [dict(e) for e in self.lg], list(self.hist), set(self.defd))
    def restore(self, s):
        self.vm = [dict(e) for e in s[0]]; self.lg = [dict(e) for e in s[1]]; self.hist = list(s[2]); self.defd = set(s[3])
    def fence(self):
        self._put(Ins('s_nop 7')); self._put(Ins('s_nop 3')); self.hist = []
    def text(self):
        return '\n'.join(self.out) + '\n'

def interleave(main, extra, start=0, every=1, per=1):
    out, k = [], 0
    for i, m in enumerate(main):
        out.append(m)
        if i >= start and (i - start) % every == 0:
            out += extra[k:k + per]; k += per
    out += extra[k:]
    return out
```

```python
import sys, os, struct
sys.path.insert(0, os.path.dirname(os.path.abspath(__file__)))
from emit import Emit, interleave
import tables as T

KN = 'parallel_sum__ssm_conv_s4d__mixer_channel_mlp__prompt_kernel'
OPT = dict(stamps=0)
for a_ in sys.argv[2:]:
    k_, v_ = a_.split('='); OPT[k_] = int(v_)
def opt(k, d): return OPT.get(k, d)

FA, FH, FY = 0x20000, 0x40000, 0x80000
FH1 = 0x20000
STATS = 0x10000
UOFF, YOFF, W2P, HOFF = 0x100000, 0x400000, 0x700000, 0xA00000
STAMP = 0x1800000
WSSZ = 0x2000000
OOB = 0x10000000
SPIN = 20000
SLOT = 32768
LNS = 131072
RARR = 131072
UARR = RARR + 8448
KC = UARR + 9280
B1L = KC + 9216
CSL = B1L + 512
assert CSL + 512 <= 163840
PKS = 141824
KTAB = 65536
KTAB_SP = 0
XCH = 0
RED = 0
CHP = 57 * 528
LDS_BYTES = 163840
LOG2E, INV2PI = 0x3fb8aa3b, 0x3e22f983
f2u = lambda f: struct.unpack('<I', struct.pack('<f', f))[0]

SX, SW1, SWS, SH, SW2, SO = 4, 8, 12, 16, 20, 24
sW, sXCD, sJ, sMI, sNI, sM64, sN80, sPAIR = 28, 29, 30, 31, 32, 33, 34, 35
P_U, P_LA, P_AI, P_CR, P_CI, P_LDT, P_DSK, P_BX, P_W1, P_B1, P_W2, P_B2, P_OUT, P_DBG, P_WS = range(36, 66, 2)
sHS0, sHS1, sFH, sSTAT, sUL0, sUL1, sYS, sFY, sW2A, sHSA, sHLA, sYA, sYB, sOUT, sPK0, sB1 = range(36, 52)
sO, sCH = 52, 53
sDX, sDW, sSPIN, sK, sS0, sXB, sWB = 72, 73, 74, 75, 76, 78, 79
sKS = 80
sFHP, sPK1 = 94, 95
sFYP, sB2 = 48, 50
sTB8, sM0, sIT, sU0 = 96, 97, 98, 99
sST = 100

def srd(n): return 's[%d:%d]' % (n, n + 3)
def sp(n): return 's[%d:%d]' % (n, n + 1)
def v(n, k=1): return 'v%d' % n if k == 1 else 'v[%d:%d]' % (n, n + k - 1)
def a(n, k=1): return 'a%d' % n if k == 1 else 'a[%d:%d]' % (n, n + k - 1)

vGI = 2
vPAR = 176
vDS = 12
vBAND = 192
vSEL = 212
vW2O = 220
vKT, vKA, vKA2, vC1, vC2, vZS = 222, 223, 224, 225, 226, 227
vPL, vPA = 228, 229
vSTAMP = 231
vSTASH = 232
vSTAT = 232
vRW, vR8, vR8h, vR4, vUB, vUG, vUL, vZP, vXW, vXR, vYO, vHS, vB1W, vCSW, vBCR, vSTO, vB1R, vPA2 = range(236, 254)

e = Emit()
nlab = [0]
def lab(s):
    nlab[0] += 1
    return 'L_%s_%d' % (s, nlab[0])

SKIP = set(int(x) for x in os.environ.get('SKIP', '').split(',') if x)
def stamp(i):
    if not OPT['stamps'] or i in SKIP: return
    e(('s_memtime %s' if OPT['stamps'] == 2 else 's_memrealtime %s') % sp(sST))
    e('v_writelane_b32 %s, s%d, %d' % (v(vSTAMP), sST, i))

def scout(role, rnd):
    if not opt('scout', 1): return
    e('s_mov_b64 exec, 0')
    for w in range(3):
        e('s_cmp_eq_u32 s%d, %d' % (sW, w)); e('s_cbranch_scc1 L_hop_%s_%d_%d' % (role, rnd, w))
    e('s_branch L_hop_%s_%d_3' % (role, rnd))
    e.raw('L_ret_%s_%d:' % (role, rnd))
    e('s_mov_b64 exec, -1')
def bench_begin(name):
    if os.environ.get('BENCH') != name: return
    e('s_waitcnt vmcnt(0) lgkmcnt(0)'); e('s_barrier'); stamp(40); e('s_mov_b32 s3, 16'); e.raw('L_bench:')
def bench_end(name):
    if os.environ.get('BENCH') != name: return
    e('s_sub_u32 s3, s3, 1'); e('s_cmp_lg_u32 s3, 0'); e('s_cbranch_scc1 L_bench'); stamp(41)
def mark(name): e.raw('L_mk_%s:' % name)

def put(item):
    if isinstance(item, list):
        for x in item: put(x)
    elif isinstance(item, tuple): e(item[0], tag=item[1])
    elif callable(item): item()
    else: e(item)
def size(item):
    if isinstance(item, list): return sum(size(x) for x in item)
    return 3 if callable(item) else 1

def stash_reg(j, db):
    n = (j * 5 + db) * 4
    return a(n, 4) if n < 256 else v(vSTASH + n - 256, 4)
def stash_loads():
    G = []
    for j in range(14):
        for db in range(5):
            g = []
            if db == 0: g.append('s_mul_i32 s%d, s%d, 5' % (sS0 + (j & 1), sKS + j))
            g.append(('buffer_load_dwordx4 %s, %s, %s, s%d offen offset:%d sc1' % (stash_reg(j, db), v(vW2O + (db == 4)), srd(SW2), sS0 + (j & 1), (db & 3) * 1024), 'stash'))
            G.append(g)
    return G
def take(L, n):
    r = L[:n]; del L[:n]; return r

def poll(vdst, nreg, load, name, val=1, mask=False):
    ok, lp = lab(name + '_ok'), lab(name + '_spin')
    def cmp(emit):
        for k in range(1, nreg): emit('v_and_b32 %s, %s, %s' % (v(vdst), v(vdst), v(vdst + k)))
        if mask: emit('v_and_b32 %s, 1, %s' % (v(vdst), v(vdst)))
        emit('v_cmp_ne_u32 vcc, %d, %s' % (val, v(vdst)))
    cmp(e)
    e('s_cbranch_vccz %s' % ok)
    r = lambda s: e.raw('    ' + s)
    r('s_mov_b32 s%d, %d' % (sSPIN, SPIN))
    e.raw(lp + ':')
    r('s_sleep %d' % opt('sleep', 8)); r(load); r('s_waitcnt vmcnt(0)')
    cmp(r)
    r('s_cbranch_vccz %s' % ok)
    r('s_sub_u32 s%d, s%d, 1' % (sSPIN, sSPIN)); r('s_cmp_lg_u32 s%d, 0' % sSPIN); r('s_cbranch_scc1 %s' % lp)
    e.raw(ok + ':')

def poll0(vdst, nreg, load, name, tag, val=1, mask=False):
    skip = lab(name + '_skip')
    e('s_cmp_lg_u32 s%d, 0' % sW)
    e.wait_vm(tag)
    e('s_cbranch_scc1 %s' % skip)
    poll(vdst, nreg, load, name, val, mask)
    e.raw(skip + ':')

def flag_store(s, off=0, optional=False, val=1):
    e('v_mov_b32 v11, %d' % val)
    e('s_mov_b64 exec, 1')
    e('buffer_store_dword v11, off, %s, s%d offset:%d sc1' % (srd(SWS), s, off), tag='flag', opt=optional)
    e('s_mov_b64 exec, -1')

def own_clear(nfy):
    L = ['v_mov_b32 v14, s%d' % sFY, 'v_lshl_add_u32 v14, v0, 8, v14', 'v_mov_b32 v15, 0', 's_add_u32 s68, s%d, %d' % (sFH, FH1),
         'v_writelane_b32 v14, s%d, %d' % (sFH, nfy), 'v_writelane_b32 v14, s68, %d' % (nfy + 1), 's_mov_b64 exec, %d' % ((4 << nfy) - 1),
         ('buffer_store_dword v15, v14, %s, 0 offen sc1' % srd(SWS), 'pks'), 's_mov_b64 exec, -1']
    return [L]

def mk_srd(s, p, n, add=None):
    L = []
    if add is None: L += ['s_mov_b32 s%d, s%d' % (s, p), 's_mov_b32 s%d, s%d' % (s + 1, p + 1)]
    else: L += [['s_add_u32 s%d, s%d, s%d' % (s, p, add), 's_addc_u32 s%d, s%d, 0' % (s + 1, p + 1)]]
    return L + ['s_mov_b32 s%d, %d' % (s + 2, n), 's_mov_b32 s%d, 0x20000' % (s + 3)]

vXD, vWD = 16, 20
vXB, vWA = 24, 28
vCSEL = 36
vACC = 40
vCS = 104
vKV = 108
aFP, aFQ = 192, 224

def prologue():
    e('s_cmp_ge_u32 s2, 256')
    e('s_cbranch_scc1 L_end')
    e('s_load_dwordx16 s[36:51], s[0:1], 0')
    e('s_load_dwordx8 s[52:59], s[0:1], 64')
    e('s_load_dwordx4 s[60:63], s[0:1], 96')
    e('s_load_dwordx2 s[64:65], s[0:1], 112')
    if OPT['stamps']: e('v_mov_b32 %s, 0' % v(vSTAMP))
    e('v_lshrrev_b32 v13, 6, v0')
    e('v_and_b32 v0, 63, v0')
    e('v_readfirstlane_b32 s%d, v13' % sW)
    e('s_and_b32 s%d, s2, 7' % sXCD)
    e('s_lshr_b32 s%d, s2, 3' % sJ)
    e('v_lshlrev_b32 v1, 4, v0')
    e('s_getpc_b64 s[66:67]')
    e.raw('L_pc:')
    e('s_lshl_b32 s68, s%d, 2' % sJ)
    e('s_add_u32 s68, s68, s%d' % sW)
    e('s_lshl_b32 s68, s68, 9')
    e('v_and_b32 v12, 3, v0')
    e('v_lshl_add_u32 v12, v12, 7, s68')
    e('v_min_u32 v12, L_tab_end-L_pc-4, v12')
    e('global_load_dword v11, v12, s[66:67]', tag='pf')
    e('s_cmp_ge_u32 s%d, 28' % sJ)
    e('s_cbranch_scc1 L_spare')

def prologue2(role):
    scout(role, 0)
    e('s_lshl_b32 s%d, s%d, 5' % (sTB8, sXCD)); e('s_add_u32 s%d, s%d, s%d' % (sTB8, sTB8, sJ))
    e('s_and_b32 s68, s%d, 3' % sJ)
    e('s_lshr_b32 s%d, s%d, 2' % (sN80, sJ))
    e('s_lshl_b32 s%d, s%d, 2' % (sM64, sXCD)); e('s_add_u32 s%d, s%d, s68' % (sM64, sM64))
    e('s_lshr_b32 s69, s%d, 1' % sXCD); e('s_lshl_b32 s69, s69, 2'); e('s_add_u32 s%d, s69, s68' % sMI)
    e('s_and_b32 s69, s%d, 1' % sXCD); e('s_mul_i32 s69, s69, 7'); e('s_add_u32 s%d, s69, s%d' % (sNI, sN80))
    e('s_mul_i32 s%d, s%d, 40' % (sPAIR, sXCD))
    e('v_lshrrev_b32 v13, 5, v0'); e('v_and_b32 v14, 31, v0'); e('v_mul_u32_u24 v15, 1280, v13')
    e('v_lshl_add_u32 v76, v14, 4, v15'); e('v_lshl_add_u32 v77, v14, 3, v15')
    e('s_mul_i32 s70, s%d, 10240' % sTB8); e('s_mul_i32 s69, s%d, 2560' % sW); e('s_add_u32 s70, s70, s69')
    if role == 'f':
        e('s_mul_i32 s69, s%d, 23' % sN80); e('s_lshr_b32 s69, s69, 4'); e('s_mul_i32 s68, s68, 5'); e('s_lshr_b32 s68, s68, 1')
        e('s_add_u32 s%d, s69, s68' % sK); e('s_sub_u32 s69, s%d, 10' % sK); e('s_cmp_ge_u32 s%d, 10' % sK); e('s_cselect_b32 s%d, s69, s%d' % (sK, sK))
    if role == 'f': put(g1_addr())
    if opt('r1pos', 0) == 0: scout(role, 1)
    put(mk_srd(SX, P_U, 2621440))
    e('buffer_load_dwordx4 v[40:43], v76, %s, s70 offen' % srd(SX), tag='ln')
    e('buffer_load_dwordx4 v[44:47], v76, %s, s70 offen offset:512' % srd(SX), tag='ln')
    e('buffer_load_dwordx2 v[48:49], v77, %s, s70 offen offset:1024' % srd(SX), tag='ln')
    put(mk_srd(SW1, P_W1, 2211840))
    e('s_and_b32 s%d, s%d, 1' % (sO, sW)); e('s_lshr_b32 s%d, s%d, 1' % (sCH, sW))
    stamp(0)

vPKD, vPKR = (254, 255), (253, 230)
def unit_src(dst, su):
    return ['s_mul_i32 s69, s%d, 52429' % su, 's_lshr_b32 s69, s69, 18', 's_mul_i32 s68, s69, 5', 's_sub_u32 s68, s%d, s68' % su,
            's_mul_i32 s69, s69, 40960', 's_lshl_b32 s68, s68, 8', 's_add_u32 s%d, s69, s68' % dst]
def pack_addr():
    L = ['v_lshrrev_b32 v14, 4, v0', 'v_mul_u32_u24 v13, 1280, v14', 'v_bfe_u32 v15, v0, 1, 3', 'v_xor_b32 v15, v15, v14',
         'v_lshl_add_u32 v13, v15, 5, v13', 'v_and_b32 v15, 1, v0', 'v_lshl_add_u32 v13, v15, 4, v13',
         's_mul_i32 s68, s%d, 10240' % sW, 'v_add_u32 %s, s68, v13' % v(vPKD[0]), 'v_xor_b32 v13, 128, %s' % v(vPKD[0]), 'v_add_u32 %s, 5120, v13' % v(vPKD[1])]
    L += mk_srd(SH, P_W2, 2211840) + ['s_lshl_b32 s%d, s%d, 11' % (sU0, sW)]
    return L
def pack_raddr():
    return ['v_bfe_u32 v13, v0, 2, 3', 's_lshl_b32 s68, s%d, 1' % sW, 'v_xor_b32 v15, s68, v13', 'v_lshrrev_b32 v14, 5, v0', 'v_lshl_add_u32 v13, v14, 4, v13',
            'v_lshlrev_b32 v13, 8, v13', 'v_lshl_add_u32 v13, v15, 5, v13', 'v_and_b32 v15, 3, v0', 'v_lshl_add_u32 v13, v15, 3, v13',
            'v_add_u32 %s, %d, v13' % (v(vPKR[0]), PKS), 'v_xor_b32 %s, 32, %s' % (v(vPKR[1]), v(vPKR[0]))]
def pack_dma(k, ssrc):
    return [('s_add_u32 m0, s%d, %d' % (sU0, PKS + 8192 * k + 1024 * i), ('buffer_load_dwordx4 %s, %s, s%d offen lds' % (v(vPKD[i]), srd(SH), ssrc), 'pk')) for i in range(2)]
def pack_reads(k, dst):
    return ['ds_read_b64_tr_b16 %s, %s offset:%d' % (v(dst + 4 * i + 2 * jj, 2), v(vPKR[i]), 8192 * k + 2048 * jj) for i in range(2) for jj in range(2)]
def pack_stores(k, dst):
    return [('buffer_store_dwordx4 %s, v1, %s, s%d offen sc1' % (v(dst + 4 * i, 4), srd(SWS), ((sPK0, sPK1), (sHS0, sHS1))[k][i]), 'pks') for i in range(2)]

def late_setup():
    L = ['s_lshl_b32 s68, s2, 2', 's_add_u32 s68, s68, s%d' % sW, 's_lshl_b32 s68, s68, 7', 's_add_u32 s%d, s68, L_sc-L_pc' % sIT,
         ] + ([] if opt('latesc', 0) else ['s_load_dwordx16 s[80:95], s[66:67], s%d' % sIT, 's_add_u32 s%d, s%d, 64' % (sIT, sIT)])
    L += mk_srd(SWS, P_WS, WSSZ) + mk_srd(SO, P_OUT, 2621440)
    return L
def tab_loads():
    return ['s_lshl_b32 s69, s%d, 10' % sO, 's_add_u32 s69, s69, L_tab-L_pc', 'v_add_u32 v13, s69, v1',
            ('global_load_dwordx4 v[2:5], v13, s[66:67]', 'tab'),
            's_lshl_b32 s69, s%d, 8' % sO, 's_add_u32 s69, s69, L_tab-L_pc+2048', 'v_lshl_add_u32 v13, v0, 2, s69',
            ('global_load_dword v6, v13, s[66:67]', 'tab')]
LOAD_B = 's_load_dwordx16 s[36:51], s[66:67], s%d' % sIT

def scalar_table():
    out = []
    for wg in range(256):
        xcd, j = wg & 7, wg >> 3
        mp, n80 = j & 3, j >> 2
        m64, mi, ni = 4 * xcd + mp, 4 * (xcd >> 1) + mp, 7 * (xcd & 1) + n80
        pair = 40 * xcd + (j if j < 28 else 28 + 3 * (j - 28))
        for w in range(4):
            o, ch = w & 1, w >> 1
            rot = (n80 + opt('rotm', 0) * (mp >> 1)) % 7
            q = [w + 4 * ((i + rot) % 7) for i in range(7)]
            k0 = [((2 * x + (m64 & 1)) << 10) if x < 27 else OOB for x in q]
            A = k0 + [x ^ 1024 for x in k0] + [FH + m64 * 32 * 128, 0]
            hs0 = ((217 * ch + 4 * ni + 2 * o) << 10) if 4 * ni + 2 * o < 54 else OOB
            ul0 = UOFF + w * 64 * 10240 + pair * 32
            c = 2 * pair + ch
            ya = YOFF + n80 * 80 * 4096 + m64 * 128
            last = min(ni * 256 + o * 128, 3328)
            def pko(u, i):
                D = 8 * (u % 5) + 2 * w + i
                return W2P + ((D // 5) * 54 + u // 5) * 5120 + (D % 5) * 1024 if u < 270 else 0x40000000
            PK = [pko(wg, 0), pko(wg, 1)]
            u2 = 256 + 8 * (j - 28) + xcd
            B = [hs0, hs0 ^ 1024, FH + ((2 * mi + ch) * 32 + 2 * ni + o) * 128 if j < 28 else OOB, STATS + (128 * mi + 64 * ch) * 8,
                 ul0, ul0 + 32 * 10240, YOFF + c * 4096 + o * 2048, FY + (o * 640 + c) * 128,
                 W2P + n80 * 54 * 5120, HOFF + mi * 8 * 55296, HOFF + m64 * 4 * 55296,
                 ya + w * 65536, ya + 64 * 4096 + ch * 64, (4 * m64 + w) * 16 * 1280 + n80 * 160, n80 * 160, last]
            if j >= 28: B[0], B[1] = pko(u2, 0), pko(u2, 1)
            B[14] = PK[0]; A[15] = PK[1]
            out += A + B
    return out

def bands():
    L = ['v_and_b32 v13, 15, v0', 'v_lshrrev_b32 v14, 4, v0', 'v_lshlrev_b32 v14, 3, v14',
         'v_sub_u32 v15, v14, v13', 'v_add_u32 v15, 15, v15', 'v_min_u32 v15, 31, v15']
    for bi, nm in enumerate(('b5', 'b3a', 'b3b', 'b9', 'b7')):
        L += ['s_mov_b32 s68, %d' % T.BANDS[nm], 'v_lshrrev_b32 v14, v15, s68']
        for q in range(4):
            d = v(vBAND + 4 * bi + q)
            L += ['v_bfe_u32 %s, v14, %d, 2' % (d, 2 * q), 'v_lshl_or_b32 %s, %s, 15, %s' % (d, d, d),
                  'v_and_b32 %s, 0x10001, %s' % (d, d), 'v_mul_u32_u24 %s, 0x3f80, %s' % (d, d)]
    return L

def sels():
    L = ['v_and_b32 v13, 15, v0', 'v_lshrrev_b32 v14, 4, v0', 'v_lshlrev_b32 v14, 3, v14', 'v_sub_u32 v13, v13, v14',
         'v_and_b32 v14, 1, v13', 'v_lshlrev_b32 v14, 4, v14', 'v_mov_b32 v15, 0x3f80', 'v_lshlrev_b32 v14, v14, v15', 'v_ashrrev_i32 v13, 1, v13']
    for half in range(2):
        for q in range(4):
            L += [['v_cmp_eq_i32 vcc, %d, v13' % (q - 8 * half), 's_nop 1', 'v_cndmask_b32 %s, 0, v14, vcc' % v(vSEL + 4 * half + q)]]
    return L

def param_loads(spair, dst=vPAR, ad=100):
    L = ['s_lshl_b32 s68, s%d, 1' % spair, 's_add_u32 s68, s68, s%d' % sCH, 's_lshl_b32 s74, s68, 1', 's_lshl_b32 s68, s68, 8',
         's_lshl_b32 s69, s%d, 7' % sO, 's_add_u32 s68, s68, s69', 'v_lshl_add_u32 %s, v0, 1, s68' % v(ad), 'v_mov_b32 %s, s74' % v(ad + 1)]
    for k, p in enumerate((P_LA, P_AI, P_CR, P_CI)):
        L.append(('global_load_ushort %s, %s, %s' % (v(dst + k), v(ad), sp(p)), 'par'))
    L.append(('global_load_ushort %s, %s, %s' % (v(dst + 4), v(ad + 1), sp(P_LDT)), 'par'))
    L.append(('global_load_ushort %s, %s, %s' % (v(dst + 5), v(ad + 1), sp(P_DSK)), 'par'))
    return L

def w2_setup():
    return mk_srd(SW2, P_WS, 54 * 5120, sW2A) + ['v_mov_b32 %s, v1' % v(vW2O), 'v_add_u32 %s, 4096, v1' % v(vW2O + 1)]

def conv_addr(tab):
    L = ['v_and_b32 v13, 15, v0', 'v_lshrrev_b32 v14, 4, v0']
    L += ['s_mul_i32 s68, s%d, %d' % (sCH, CHP), 's_add_u32 s68, s68, %d' % tab, 's_lshl_b32 s70, s%d, 8' % sO, 's_add_u32 s70, s70, s68',
          'v_lshl_add_u32 %s, v0, 2, s70' % v(vKT),
          'v_mul_u32_u24 v15, 528, v13', 'v_lshl_add_u32 v15, v14, 4, v15', 's_mul_i32 s70, s%d, %d' % (sO, 16 * 528), 's_add_u32 s70, s70, s68',
          'v_add_u32 %s, s70, v15' % v(vKA), 's_add_u32 s68, s68, %d' % (32 * 528), 'v_add_u32 %s, s68, v15' % v(vKA2)]
    L += ['s_mul_i32 s68, s%d, 1536' % sCH, 's_add_u32 s68, s68, %d' % KC, 'v_mov_b32 %s, s68' % v(vZS)]
    L += ['v_lshlrev_b32 v15, 4, v13', 'v_lshl_add_u32 %s, v14, 3, v15' % v(vC1), 'v_lshlrev_b32 v15, 3, v13', 'v_lshl_add_u32 %s, v14, 7, v15' % v(vC2),
          ['v_cmp_gt_u32 vcc, 2, v14', 'v_lshlrev_b32 v15, 5, v13', 'v_lshl_add_u32 v15, v14, 3, v15', 'v_cndmask_b32 %s, %s, %s, vcc' % (v(vC1), v(vC2), v(vC1))],
          'v_add_u32 %s, 512, %s' % (v(vC1), v(vC1)),
          ['s_cmp_eq_u32 s%d, 0' % sO, 's_cselect_b64 s[70:71], -1, 0', 'v_cndmask_b32 %s, %s, v15, s[70:71]' % (v(vC1), v(vC1))],
          'v_add_u32 %s, s68, %s' % (v(vC1), v(vC1)),
          'v_lshlrev_b32 v15, 2, v13', 'v_lshl_add_u32 v15, v14, 7, v15', 'v_add_u32 v15, 1024, v15', 'v_mov_b32 %s, 1296' % v(vC2),
          ['v_cmp_gt_u32 vcc, 2, v14', 's_nop 1', 'v_cndmask_b32 %s, %s, v15, vcc' % (v(vC2), v(vC2))],
          ['v_cmp_eq_u32 vcc, 32, v0', 'v_mov_b32 v15, 1280', 's_nop 0', 'v_cndmask_b32 %s, %s, v15, vcc' % (v(vC2), v(vC2))],
          'v_add_u32 %s, s68, %s' % (v(vC2), v(vC2))]
    for k in range(8, -1, -1):
        L.append('v_add_u32_sdwa %s, s68, %s dst_sel:DWORD dst_unused:UNUSED_PAD src0_sel:DWORD src1_sel:WORD_%d' % (v(vGI + k), v(vGI + k // 2), k & 1))
    L += ['s_mul_i32 s68, s%d, 4224' % sCH, 's_add_u32 s68, s68, %d' % RARR, 's_lshl_b32 s69, s%d, 10' % sO, 's_add_u32 s69, s69, s68',
          'v_add_u32 %s, s69, v1' % v(vRW),
          'v_sub_u32 v15, 15, v13', 'v_and_b32 %s, 1, v15' % v(vR4), 'v_mul_u32_u24 %s, 2110, %s' % (v(vR4), v(vR4)),
          'v_lshl_add_u32 v15, v15, 1, %s' % v(vR4), 'v_add_u32 v15, s68, v15', 'v_lshl_add_u32 %s, v14, 4, v15' % v(vR8),
          'v_add_u32 %s, 1024, %s' % (v(vR8h), v(vR8)), 'v_lshl_add_u32 %s, v14, 3, v15' % v(vR4), 'v_add_u32 %s, 1024, %s' % (v(vR4), v(vR4))]
    L += ['s_mul_i32 s68, s%d, 4640' % sCH, 's_add_u32 s68, s68, %d' % UARR, 'v_min_u32 v15, 33, v0', 'v_lshl_add_u32 %s, v15, 4, s68' % v(vZP),
          's_add_u32 s68, s68, %d' % (544 - 32 - 512), 'v_lshlrev_b32 v15, 5, v13', 'v_lshl_add_u32 %s, v14, 4, v15' % v(vUB), 'v_add_u32 %s, s68, %s' % (v(vUB), v(vUB))]
    L += ['v_and_b32 %s, 1, v14' % v(vYO), 'v_lshl_add_u32 %s, %s, 9, v15' % (v(vYO), v(vYO)), 'v_lshrrev_b32 v15, 1, v14', 'v_lshl_add_u32 %s, v15, 4, %s' % (v(vYO), v(vYO))]
    L += ['v_lshrrev_b32 v13, 1, v0', 'v_and_b32 v14, 1, v0', 'v_mul_u32_u24 v15, 10240, v13', 'v_lshl_add_u32 %s, v14, 4, v15' % v(vUG),
          'v_mul_u32_u24 v14, 4640, v14', 'v_lshl_add_u32 v13, v13, 4, v14', 's_lshl_b32 s68, s%d, 10' % sW, 's_add_u32 s68, s68, %d' % (UARR + 544), 'v_add_u32 %s, s68, v13' % v(vUL)]
    L += ['s_lshl_b32 s68, s%d, 13' % sCH, 's_lshl_b32 s69, s%d, 12' % sO, 's_add_u32 s68, s68, s69', 'v_add_u32 %s, s68, v1' % v(vXW), 'v_xor_b32 %s, 4096, %s' % (v(vXR), v(vXW))]
    return L

def red32(r, t):
    e('v_add_f32_dpp %s, %s, %s quad_perm:[1,0,3,2] row_mask:0xf bank_mask:0xf' % (v(r), v(r), v(r)))
    e('v_add_f32_dpp %s, %s, %s quad_perm:[2,3,0,1] row_mask:0xf bank_mask:0xf' % (v(r), v(r), v(r)))
    e('v_add_f32_dpp %s, %s, %s row_half_mirror row_mask:0xf bank_mask:0xf' % (v(r), v(r), v(r)))
    e('v_add_f32_dpp %s, %s, %s row_mirror row_mask:0xf bank_mask:0xf' % (v(r), v(r), v(r)))
    e('v_mov_b32 %s, %s' % (v(t), v(r)))
    e('v_permlane16_swap_b32 %s, %s' % (v(r), v(t)))
    e('v_add_f32 %s, %s, %s' % (v(r), v(r), v(t)))

def ln_addr():
    L = ['s_mul_i32 s68, s%d, 2688' % sW, 's_add_u32 s68, s68, %d' % LNS, 'v_lshrrev_b32 v13, 5, v0', 'v_lshlrev_b32 v15, 6, v13',
         'v_add3_u32 v78, v76, v15, s68', 'v_add3_u32 v79, v77, v15, s68', 'v_lshlrev_b32 v82, 3, v13',
         'v_bfe_u32 v14, v0, 2, 2', 'v_mul_u32_u24 v14, 1344, v14', 'v_and_b32 v15, 3, v0', 'v_lshl_add_u32 v14, v15, 3, v14',
         'v_lshrrev_b32 v15, 4, v0', 's_lshl_b32 s68, s%d, 7' % sW, 's_add_u32 s68, s68, %d' % LNS, 'v_lshl_add_u32 v80, v15, 5, v14', 'v_add_u32 v80, s68, v80',
         'v_and_b32 v15, 1, v15', 's_lshl_b32 s68, s%d, 6' % sW, 's_add_u32 s68, s68, %d' % (LNS + 1024), 'v_lshl_add_u32 v81, v15, 5, v14', 'v_add_u32 v81, s68, v81',
         's_lshl_b32 s68, s%d, 6' % sTB8, 's_lshl_b32 s69, s%d, 4' % sW, 's_add_u32 s68, s68, s69', 's_add_u32 s77, s68, %d' % STATS,
         's_mul_i32 s68, s%d, 10240' % sTB8, 's_add_u32 s68, s68, %d' % UOFF, 's_lshl_b32 s71, s%d, 10' % sW, 's_add_u32 s71, s71, s68', 's_add_u32 s76, s71, 4096',
         's_lshl_b32 s70, s%d, 9' % sW, 's_add_u32 s70, s70, s68', 's_add_u32 s70, s70, 8192', 'v_mov_b32 %s, 0' % v(vPA)]
    return L

def layernorm(extra1, extra2, extra3, units=0):
    X = 52
    stamp(16)
    e.wait_vm('ln')
    stamp(17)
    if opt('latesc', 0):
        e('s_load_dwordx16 s[80:95], s[66:67], s%d' % sIT); e('s_add_u32 s%d, s%d, 64' % (sIT, sIT)); e(LOAD_B)
    for k in range(10):
        e('v_lshlrev_b32 %s, 16, %s' % (v(X + 2 * k), v(40 + k)))
        e('v_and_b32 %s, 0xffff0000, %s' % (v(X + 2 * k + 1), v(40 + k)))
    put(extra1)
    stamp(18)
    e('v_pk_add_f32 v[72:73], v[52:53], v[54:55]')
    e('v_pk_add_f32 v[74:75], v[56:57], v[58:59]')
    for k in range(4, 10, 2):
        e('v_pk_add_f32 v[72:73], v[72:73], %s' % v(X + 2 * k, 2))
        e('v_pk_add_f32 v[74:75], v[74:75], %s' % v(X + 2 * k + 2, 2))
    e('v_pk_add_f32 v[72:73], v[72:73], v[74:75]')
    e('v_add_f32 v72, v72, v73')
    red32(72, 73)
    e('v_mul_f32 v72, 0x3acccccd, v72')
    for k in range(10):
        e('v_pk_add_f32 %s, %s, v[72:73] op_sel_hi:[1,0] neg_lo:[0,1] neg_hi:[0,1]' % (v(X + 2 * k, 2), v(X + 2 * k, 2)))
    e('v_pk_mul_f32 v[74:75], v[52:53], v[52:53]')
    e('v_pk_mul_f32 v[50:51], v[54:55], v[54:55]')
    for k in range(2, 10, 2):
        e('v_pk_fma_f32 v[74:75], %s, %s, v[74:75]' % (v(X + 2 * k, 2), v(X + 2 * k, 2)))
        e('v_pk_fma_f32 v[50:51], %s, %s, v[50:51]' % (v(X + 2 * k + 2, 2), v(X + 2 * k + 2, 2)))
    e('v_pk_add_f32 v[74:75], v[74:75], v[50:51]')
    e('v_add_f32 v74, v74, v75')
    red32(74, 75)
    e('v_mul_f32 v74, 0x3acccccd, v74')
    e('v_add_f32 v75, 0x3727c5ac, v74')
    e('v_rsq_f32 v50, v75')
    stamp(19)
    put(extra2)
    stamp(20)
    for k in range(10):
        e('v_pk_mul_f32 %s, %s, v[50:51] op_sel_hi:[1,0]' % (v(X + 2 * k, 2), v(X + 2 * k, 2)))
    for k in range(10):
        e('v_cvt_pk_bf16_f32 %s, %s, %s' % (v(40 + k), v(X + 2 * k), v(X + 2 * k + 1)))
    e('ds_write_b128 v78, v[40:43]')
    e('ds_write_b128 v78, v[44:47] offset:512')
    e('ds_write_b64 v79, v[48:49] offset:1024')
    e('v_mul_f32 v74, v74, v50')
    e('v_mul_f32 v74, v74, v50')
    e('v_add_f32 v74, 0x3727c5ac, v74')
    e('v_rsq_f32 v74, v74')
    e('s_mov_b32 exec_lo, 1'); e('s_mov_b32 exec_hi, 1')
    e('v_mul_f32 v74, v74, v50')
    e('v_mul_f32 v75, v74, v72')
    e('buffer_store_dwordx2 v[74:75], v82, %s, s77 offen sc1' % srd(SWS), tag='u')
    e('s_mov_b64 exec, -1')
    stamp(21)
    e.wait_vm('pk', lg0=True)
    e('s_barrier')
    stamp(22)
    for r, (ad, off) in enumerate(((80, 0), (80, 512), (81, 0))):
        e('ds_read_b64_tr_b16 %s, %s offset:%d' % (v(52 + 4 * r, 2), v(ad), off))
        e('ds_read_b64_tr_b16 %s, %s offset:%d' % (v(54 + 4 * r, 2), v(ad), off + 4 * 1344))
    for k in range(units): put(pack_reads(k, 64 + 8 * k))
    e('buffer_store_dwordx4 v[52:55], v1, %s, s71 offen sc1' % srd(SWS), tag='u')
    e('buffer_store_dwordx4 v[56:59], v1, %s, s76 offen sc1' % srd(SWS), tag='u')
    e('s_mov_b32 exec_hi, 0')
    e('buffer_store_dwordx4 v[60:63], v1, %s, s70 offen sc1' % srd(SWS), tag='u')
    e('s_mov_b32 exec_hi, -1')
    for k in range(units): put(pack_stores(k, 64 + 8 * k))
    put(extra3)
    stamp(23)

READY_LOAD = 'global_load_dword %s, %s, %s sc1' % (v(vPL), v(vPA), sp(P_DBG))
def fa_publish(val, first=True):
    skip = lab('fa_skip')
    e('s_cmp_lg_u32 s%d, 0' % sW)
    if first: e.wait_vm('rdy')
    e('s_cbranch_scc1 %s' % skip)
    if first:
        poll(vPL, 1, READY_LOAD, 'rdy')
        e('s_lshl_b32 s%d, s%d, 7' % (sTB8, sTB8)); e('s_add_u32 s%d, s%d, %d' % (sTB8, sTB8, FA))
    flag_store(sTB8, optional=True, val=val)
    e.raw(skip + ':')

def g1_addr():
    L = ['v_lshrrev_b32 v13, 3, v0', 'v_mul_u32_u24 v13, 1280, v13', 'v_lshrrev_b32 v14, 4, v0', 'v_and_b32 v15, 7, v0',
         'v_xor_b32 v15, v15, v14', 's_mul_i32 s68, s%d, %d' % (sW, 32 * 1280),
         'v_lshl_add_u32 v13, v15, 4, v13', 'v_add_u32 %s, s68, v13' % v(vXD), 'v_xor_b32 v13, 64, %s' % v(vXD),
         'v_add_u32 %s, %d, v13' % (v(vXD + 1), 8 * 1280), 'v_add_u32 %s, %d, %s' % (v(vXD + 2), 16 * 1280, v(vXD)),
         'v_add_u32 %s, %d, v13' % (v(vXD + 3), 24 * 1280)]
    L += ['v_mul_u32_u24 v13, 3456, v14', 'v_bfe_u32 v15, v0, 1, 3', 'v_lshlrev_b32 v14, 1, v14', 'v_xor_b32 v15, v15, v14',
          'v_lshl_add_u32 v13, v15, 5, v13', 'v_and_b32 v15, 1, v0', 'v_lshl_add_u32 v13, v15, 4, v13', 's_mul_i32 s68, s%d, %d' % (sW, 16 * 3456),
          'v_add_u32 %s, s68, v13' % v(vWD)]
    for i in range(1, 4): L.append('v_add_u32 %s, %d, %s' % (v(vWD + i), 4 * 3456 * i, v(vWD)))
    L += ['s_mul_i32 s%d, s%d, %d' % (sXB, sMI, 128 * 1280), 's_lshl_b32 s%d, s%d, 8' % (sWB, sNI), 's_lshl_b32 s%d, s%d, 12' % (sM0, sW)]
    return L

def g1_read_addr():
    L = ['v_and_b32 v13, 31, v0', 'v_bfe_u32 v15, v0, 1, 3', 'v_lshrrev_b32 v14, 5, v0', 'v_xor_b32 v15, v15, v14',
         'v_lshlrev_b32 v13, 7, v13', 'v_lshl_add_u32 v13, v15, 4, v13', 's_lshl_b32 s69, s%d, 13' % sCH, 'v_add_u32 %s, s69, v13' % v(vXB)]
    for k in range(1, 4): L.append('v_xor_b32 %s, %d, %s' % (v(vXB + k), 32 * k, v(vXB)))
    L += ['v_bfe_u32 v13, v0, 2, 2', 'v_bfe_u32 v15, v0, 4, 1', 'v_lshl_or_b32 v15, v13, 1, v15', 'v_lshl_add_u32 v13, v14, 3, v13',
          'v_lshlrev_b32 v13, 8, v13', 's_lshl_b32 s69, s%d, 2' % sO, 's_lshl_b32 s68, s%d, 1' % sCH, 's_or_b32 s69, s69, s68',
          'v_xor_b32 v15, s69, v15', 'v_lshl_add_u32 v13, v15, 5, v13', 'v_and_b32 v15, 3, v0', 'v_lshl_add_u32 v13, v15, 3, v13',
          'v_add_u32 %s, 16384, v13' % v(vWA), 'v_xor_b32 %s, 64, %s' % (v(vWA + 1), v(vWA))]
    for k in range(6): L.append('v_add_u32 %s, 0x10000, %s' % (v(vXB + 6 + k), v(vXB + k)))
    L += ['v_lshrrev_b32 v13, 4, v0', 'v_xor_b32 v13, v13, v0', 'v_and_b32 v13, 1, v13', 'v_add_u32 v13, -1, v13', 'v_and_b32 %s, 0x3f803f80, v13' % v(vCSEL)]
    for k in range(1, 4): L.append('v_mov_b32 %s, %s' % (v(vCSEL + k), v(vCSEL)))
    return L

def g1_dma(s):
    slot = (s % 4) * SLOT
    head = ['s_lshl_b32 s%d, s%d, 7' % (sDX, sK), 's_add_u32 s%d, s%d, s%d' % (sDX, sDX, sXB),
            's_mul_i32 s%d, s%d, %d' % (sDW, sK, 64 * 3456), 's_add_u32 s%d, s%d, s%d' % (sDW, sDW, sWB),
            's_add_u32 s%d, s%d, 1' % (sK, sK), 's_cmp_eq_u32 s%d, 10' % sK, 's_cselect_b32 s%d, 0, s%d' % (sK, sK)]
    P = []
    for i in range(4):
        P.append(('s_add_u32 m0, s%d, %d' % (sM0, slot + i * 1024), ('buffer_load_dwordx4 %s, %s, s%d offen lds' % (v(vXD + i), srd(SX), sDX), 'st%d' % s)))
        P.append(('s_add_u32 m0, s%d, %d' % (sM0, slot + 16384 + i * 1024), ('buffer_load_dwordx4 %s, %s, s%d offen lds' % (v(vWD + i), srd(SW1), sDW), 'st%d' % s)))
    return head, P
def g1_dma_flat(s):
    h, P = g1_dma(s)
    return [h] + [[p[0], p[1]] for p in P]

def g1_reads(s, ks, F):
    slot = (s % 4) * SLOT
    hi = 6 if slot >= 65536 else 0
    so = slot & 0xffff
    L = []
    for k in range(2):
        for q in range(2):
            o = so + 8192 * ks + 4096 * k
            L.append('ds_read_b64_tr_b16 %s, %s offset:%d' % (a(F + 16 * k + 4 * q, 2), v(vWA + hi + q), o))
            L.append('ds_read_b64_tr_b16 %s, %s offset:%d' % (a(F + 16 * k + 4 * q + 2, 2), v(vWA + hi + q), o + 1024))
            L.append('ds_read_b128 %s, %s offset:%d' % (a(F + 16 * k + 8 + 4 * q, 4), v(vXB + hi + 2 * ks + k), so + 4096 * q))
    return L

def g1_mfma(F, first):
    L = []
    for k in range(2):
        for (fb, tb) in ((0, 0), (1, 0), (0, 1), (1, 1)):
            d = v(vACC + 32 * fb + 16 * tb, 16)
            L.append('v_mfma_f32_32x32x16_bf16 %s, %s, %s, %s' % (d, a(F + 16 * k + 4 * fb, 4), a(F + 16 * k + 8 + 4 * tb, 4), '0' if first and k == 0 else d))
        L.append('v_mfma_f32_16x16x32_bf16 %s, %s, %s, %s' % (v(vCS, 4), a(F + 16 * k, 4), v(vCSEL, 4), '0' if first and k == 0 else v(vCS, 4)))
    return L

def sched(m, reads, pairs, vm, stream, cap32, cap16=2):
    n = len(m)
    cap = [cap32 if '32x32' in x else cap16 for x in m]
    slots = [[] for _ in m]
    big = [i for i in range(n) if cap[i] > 2] or list(range(n))
    prev = 0
    for k, p in enumerate(pairs):
        i = big[min(len(big) - 1, 1 + k * len(big) // max(1, len(pairs)))]
        if i > prev: slots[i - 1].append(p[0]); slots[i].insert(0, p[1])
        else: slots[i].append([p[0], p[1]])
        prev = i
    for k, g in enumerate(vm):
        slots[big[min(len(big) - 1, k * len(big) // len(vm))]].append(g)
    r = 0
    for lim in (3, 4, 6):
        for i in range(n):
            while r < len(reads) and size(slots[i]) < min(cap[i] if lim == 3 else lim, lim): slots[i].append(reads[r]); r += 1
    assert r == len(reads)
    for i in range(n):
        while stream and size(slots[i]) + size(stream[0]) <= max(cap[i], size(stream[0]) if not slots[i] else 0): slots[i].append(stream.pop(0))
    out = []
    for x, sl in zip(m, slots): out.append(x); out += sl
    return out
```

```python
from g2a import *

kC, kW1, kW16, kW256 = 166, 168, 170, 172
kA, kB = 174, 182
kS = (184, 186)
kP = (188, 190)
def kgen_setup(pk):
    A2, B2, DT, t0, t1 = 184, 185, 186, 189, 190
    L = ['v_lshlrev_b32 %s, 16, %s' % (v(vPAR + k), v(vPAR + k)) for k in range(6)]
    L += ['v_mul_f32 %s, 0x%x, %s' % (v(t0), LOG2E, v(vPAR + 4)), 'v_mul_f32 %s, 0x%x, %s' % (v(t1), LOG2E, v(vPAR)),
          'v_exp_f32 %s, %s' % (v(t0), v(t0)), 'v_exp_f32 %s, %s' % (v(t1), v(t1)),
          ['s_cmp_eq_u32 s%d, 0' % sO, 's_cselect_b64 vcc, 1, 0', 'v_cndmask_b32 %s, 0, %s, vcc' % (v(vDS), v(vPAR + 5))],
          'v_cvt_pk_bf16_f32 %s, %s, %s' % (v(t0), v(t0), v(t1)),
          'v_lshlrev_b32 %s, 16, %s' % (v(DT), v(t0)), 'v_and_b32 %s, 0xffff0000, %s' % (v(t1), v(t0)),
          'v_mul_f32 %s, %s, %s' % (v(t1), v(t1), v(DT)), 'v_mul_f32 %s, %s, %s' % (v(B2), v(vPAR + 1), v(DT)),
          'v_mul_f32 %s, 0x%x, %s' % (v(A2), LOG2E ^ 0x80000000, v(t1)), 'v_mul_f32 %s, 0x%x, %s' % (v(B2), INV2PI, v(B2)),
          'v_add_f32 %s, %s, %s' % (v(DT), v(DT), v(DT)),
          'v_mul_f32 %s, %s, %s' % (v(kC), v(vPAR + 2), v(DT)), 'v_mul_f32 %s, %s, %s' % (v(kC + 1), v(vPAR + 3), v(DT))]
    for (W, tt) in ((kW1, None), (kW16, 0x41800000), (kW256, 0x43800000)):
        if tt is None:
            L += ['v_fract_f32 %s, %s' % (v(t1), v(B2)), 'v_exp_f32 %s, %s' % (v(t0), v(A2))]
        else:
            L += ['v_mul_f32 %s, 0x%x, %s' % (v(t1), tt, v(B2)), 'v_mul_f32 %s, 0x%x, %s' % (v(t0), tt, v(A2)),
                  'v_fract_f32 %s, %s' % (v(t1), v(t1)), 'v_exp_f32 %s, %s' % (v(t0), v(t0))]
        L += ['v_cos_f32 %s, %s' % (v(W), v(t1)), 'v_sin_f32 %s, %s' % (v(W + 1), v(t1)),
              'v_mul_f32 %s, %s, %s' % (v(W), v(W), v(t0)),
              ('v_mul_f32_e64 %s, -%s, %s' if W == kW16 else 'v_mul_f32 %s, %s, %s') % (v(W + 1), v(W + 1), v(t0))]
    return L

def cmul(d, x, y, pk):
    if pk:
        return ['v_pk_mul_f32 %s, %s, %s op_sel:[0,0] op_sel_hi:[0,1]' % (v(d, 2), v(x, 2), v(y, 2)),
                'v_pk_fma_f32 %s, %s, %s, %s op_sel:[1,1,0] op_sel_hi:[1,0,1] neg_lo:[1,0,0]' % (v(d, 2), v(x, 2), v(y, 2), v(d, 2))]
    return ['v_mul_f32 %s, %s, %s' % (v(d), v(x), v(y)), 'v_mul_f32 %s, %s, %s' % (v(d + 1), v(x), v(y + 1)),
            'v_fma_f32 %s, -%s, %s, %s' % (v(d), v(x + 1), v(y + 1), v(d)), 'v_fmac_f32 %s, %s, %s' % (v(d + 1), v(x + 1), v(y))]

def kgen_rows(pk, write):
    L = []
    def out(row, src): L.extend(['v_cvt_pk_bf16_f32 %s, %s, %s' % (v(vKV + row), v(src), v(src + 1))] + write(row))
    def chain(row0, start, W, n):
        cur = start; out(row0, cur)
        for r in range(1, n):
            d = kP[r & 1]; L.extend(cmul(d, cur, W, pk)); out(row0 + r, d); cur = d
    L.extend(['v_mov_b32 %s, 0x3f80' % v(vKV + 41)] + write(41))
    chain(42, kW16, kW16, 15)
    chain(0, kC, kW1, 16)
    L.extend(cmul(kA, kW1, kW1, pk)); L.extend(cmul(kS[0], kC, kW256, pk)); chain(16, kS[0], kA, 8)
    L.extend(cmul(kB, kA, kA, pk)); L.extend(cmul(kS[1], kS[0], kW256, pk)); chain(24, kS[1], kB, 4)
    L.extend(cmul(kS[0], kS[1], kW256, pk)); chain(28, kS[0], kB, 4)
    L.extend(cmul(kA, kB, kB, pk))
    for f in range(4):
        L.extend(cmul(kS[(f + 1) & 1], kS[f & 1], kW256, pk)); chain(32 + 2 * f, kS[(f + 1) & 1], kA, 2)
    L.extend(cmul(kS[1], kS[0], kW256, pk)); out(40, kS[1])
    return L

def ktail(koff, extra, post=None):
    FA_, FA2, FB = 40, 72, 104
    R = []
    for ks in range(8):
        R.append('ds_read_b128 %s, %s offset:%d' % (v(FB + 4 * ks, 4), v(vKA2), 9 * 528 + 64 * ks))
        R.append('ds_read_b128 %s, %s offset:%d' % (v(FA_ + 4 * ks, 4), v(vKA), 64 * ks))
        R.append('ds_read_b128 %s, %s offset:%d' % (v(FA2 + 4 * ks, 4), v(vKA2), 64 * ks))
    put(R[:12])
    e('v_mov_b32 v28, 0')
    put(extra)
    for ks in range(8):
        e('v_mfma_f32_16x16x32_bf16 v[16:19], %s, %s, %s' % (v(FA_ + 4 * ks, 4), v(FB + 4 * ks, 4), '0' if ks == 0 else 'v[16:19]'))
        if ks < 4: put(R[12 + 3 * ks:14 + 3 * ks])
        e('v_mfma_f32_16x16x32_bf16 v[20:23], %s, %s, %s' % (v(FA2 + 4 * ks, 4), v(FB + 4 * ks, 4), '0' if ks == 0 else 'v[20:23]'))
        if ks < 4: put(R[14 + 3 * ks])
    e('ds_write_b32 %s, v28 offset:%d' % (v(vZS), koff + 2 * T.ZERO))
    if post: post()
    e('v_add_f32 v16, v16, %s' % v(vDS))
    e('v_cvt_pk_bf16_f32 v25, v18, v19'); e('v_cvt_pk_bf16_f32 v24, v16, v17')
    e('ds_write_b64 %s, v[24:25] offset:%d' % (v(vC1), koff))
    e('v_cvt_pk_bf16_f32 v26, v20, v21'); e('v_cvt_pk_bf16_f32 v27, v22, v23')
    e('ds_write_b32 %s, v26 offset:%d' % (v(vC2), koff))
    e('ds_write_b32 %s, v27 offset:%d' % (v(vC2), koff + 64))

FAALL_LOAD = 'buffer_load_dword v212, v213, %s, 0 offen sc1' % srd(SWS)
FAALL_ADDR = ['s_lshl_b32 s%d, s%d, 13' % (sSPIN, sW), 's_add_u32 s%d, s%d, %d' % (sSPIN, sSPIN, FA), 'v_lshl_add_u32 v213, v0, 7, s%d' % sSPIN]
FAOWN_LOAD = 'buffer_load_dword %s, %s, %s, 0 offen sc1' % (v(vPL), v(vPA), srd(SWS))
def gelu_addr():
    L = ['v_bfe_u32 v13, v0, 4, 1', 'v_mul_u32_u24 v13, 55296, v13', 'v_lshrrev_b32 v14, 5, v0', 'v_lshl_add_u32 v13, v14, 8, v13',
         'v_and_b32 v15, 15, v0', 'v_lshl_add_u32 %s, v15, 4, v13' % v(vHS)]
    L += ['s_lshl_b32 s68, s%d, 8' % sO, 's_add_u32 s68, s68, %d' % B1L, 'v_and_b32 v13, 31, v0', 'v_lshl_add_u32 %s, v13, 3, s68' % v(vB1W),
          's_lshl_b32 s69, s%d, 7' % sCH, 's_add_u32 s68, s68, s69', 'v_lshl_add_u32 %s, v14, 4, s68' % v(vBCR),
          'v_and_b32 v15, 1, v0', 'v_lshlrev_b32 v15, 6, v15', 'v_lshrrev_b32 v14, 4, v0', 'v_lshl_add_u32 v15, v14, 4, v15', 'v_add_u32 %s, s68, v15' % v(vCSW),
          'v_lshlrev_b32 %s, 3, v13' % v(vSTO)]
    return L
def gelu_addr2():
    return mk_srd(SH, P_WS, 8 * 55296, sHSA) + ['v_and_b32 v13, 31, v0', 'v_lshl_add_u32 v15, v13, 2, s%d' % sB1, ('global_load_dword %s, v15, %s' % (v(vB1R), sp(P_B1)), 'b1')]

def gemm1(stash, dq):
    cap = opt('cap', 5)
    ipk = opt('ipk', 1)
    ifa = opt('ifa', 6)
    iall = opt('iall', 7)
    iu = opt('iu', 2)
    quota = [opt('q0', 10), opt('q1', 10), opt('q2', 10), opt('q3', 10)] + [8] * 6
    stream = tab_loads() + w2_setup() + own_clear(1) + kgen_setup(False) + ['@pk'] + gelu_addr2() + kgen_rows(False, lambda r: []) + conv_addr(KTAB)
    if opt('nostream', 0):
        k = stream.index('@pk'); put(stream[:k] + stream[k + 8:]); stream = stream[k:k + 8]
    for s in range(10):
        mark('g1_%d' % s)
        bench_begin('g1_%d' % s)
        tags = ['st%d' % s] + (['pk'] if s == ipk + 2 else []) + (['pks'] if s == ipk + 4 else []) + (['u'] if s == iu else [])
        assert not any(x[0] <= s for x in dq)
        e.wait_vm(tags, lg0=True)
        if s < 4: stamp(42 + s)
        e('s_barrier')
        if s in (1, 5, 9): stamp({1: 2, 5: 3, 9: 4}[s])
        if s in (0, 2, 3, 7): stamp({0: 24, 2: 25, 3: 27, 7: 26}[s])
        pairs = []
        while dq and len(pairs) < quota[s] and dq[0][0] <= s + 3:
            st, hd, p = dq.pop(0)
            pairs.append(([hd, p[0]] if hd else p[0], p[1]))
        vm1, vm2, rdx = [], [], []
        if s == ipk: pairs = pairs + pack_dma(0, sPAIR)
        if s == ipk + 2: rdx = pack_reads(0, 212); vm2 += pack_stores(0, 212)
        if s == iu: fa_publish(1)
        if s == ipk + 4: fa_publish(3, False)
        if s == ifa: vm2 += [['v_and_b32 %s, 15, v0' % v(vPA), 's_lshl_b32 s%d, s%d, 11' % (sIT, sMI), 's_add_u32 s%d, s%d, %d' % (sIT, sIT, FA), 'v_lshl_add_u32 %s, %s, 7, s%d' % (v(vPA), v(vPA), sIT), (FAOWN_LOAD, 'faown')]]
        if s == ifa + 2:
            vm1 += [('buffer_load_dwordx2 %s, %s, %s, s%d offen offset:%d sc1' % (v(vSTAT + 2 * tb, 2), v(vSTO), srd(SWS), sSTAT, 256 * tb), 'stat') for tb in range(2)]
        if s == iall: vm2 += [FAALL_ADDR + [(FAALL_LOAD, 'faall')]]
        if s >= iall + 2: vm1 += take(stash, opt('g1st', 4)); vm2 += take(stash, opt('g1st', 4))
        hold = []
        if '@pk' in stream:
            k = stream.index('@pk')
            if s <= ipk: hold = stream[k:]; stream = stream[:k]
            else: stream.pop(k)
        cur = stream
        if s == 9:
            print('stream overflow', size(cur)); put(cur)
            cur = ['ds_write_b32 %s, %s offset:%d' % (v(vKT), v(vKV + r), r * 528) for r in range(57)]
            cur += ['v_lshlrev_b32 v14, 16, %s' % v(vB1R), 'v_and_b32 v15, 0xffff0000, %s' % v(vB1R), 'ds_write_b64 %s, v[14:15]' % v(vB1W)]
        rd0 = g1_reads(s, 0, aFP) + rdx
        h = (len(pairs) + 1) // 2
        c = cap + (opt('capx', 1) if s < opt('capn', 3) else 0)
        if s == 0:
            put(rd0); put([[p[0], p[1]] for p in pairs[:3]]); p2 = pairs[3:]
        else:
            put(sched(g1_mfma(aFQ, False), rd0, pairs[:h], vm1, cur, c)); p2 = pairs[h:]
        put(sched(g1_mfma(aFP, s == 0), g1_reads(s, 1, aFQ), p2, vm2, cur, c))
        if s == ifa + 1: poll0(vPL, 1, FAOWN_LOAD, 'faown', 'faown', mask=True)
        if s == iall + 1: poll(212, 1, FAALL_LOAD, 'faall', val=3)
        stream = cur + hold
        bench_end('g1_%d' % s)
    assert not dq
    put(sched(g1_mfma(aFQ, False), [], [], take(stash, opt('g1st', 4)) if iall < 8 else [], stream, cap))
    put(stream)

def gelu(stash):
    mark('gelu')
    vB = (108, 140); vC = (124, 156); vK = 172; P, Z, O = 16, 24, 32
    e('s_mov_b32 exec_lo, 0x30003'); e('s_mov_b32 exec_hi, 0x30003')
    e('ds_write_b128 %s, %s offset:512' % (v(vCSW), v(vCS, 4)))
    e('s_mov_b64 exec, -1')
    for j in range(4):
        e('ds_read_b128 %s, %s offset:%d' % (v(vB[0] + 4 * j, 4), v(vBCR), 32 * j))
        e('ds_read_b128 %s, %s offset:%d' % (v(vC[0] + 4 * j, 4), v(vBCR), 512 + 32 * j))
    k0 = -2.0 * 0.7978845608028654 * 1.4426950408889634
    e('v_mov_b32 %s, 0x%x' % (v(vK), f2u(k0 * 0.044715)))
    e('v_mov_b32 %s, 0x%x' % (v(vK + 1), f2u(k0)))
    e('v_xor_b32 %s, 128, %s' % (v(vBCR), v(vBCR)))
    stamp(5)
    bench_begin('gelu')
    n = 0
    per = opt('gest', 2)
    for fb in range(2):
        for tb in range(2):
            st = vSTAT + 2 * tb
            for p in range(2):
                Oo = O + 4 * (n & 1)
                I = []
                for q in range(4):
                    I.append('v_pk_fma_f32 %s, %s, %s, %s op_sel:[0,1,0] op_sel_hi:[1,1,1] neg_lo:[0,1,0] neg_hi:[0,1,0]' % (v(P + 2 * q, 2), v(vC[fb] + 8 * p + 2 * q, 2), v(st, 2), v(vB[fb] + 8 * p + 2 * q, 2)))
                for q in range(4):
                    I.append('v_pk_fma_f32 %s, %s, %s, %s op_sel_hi:[1,0,1]' % (v(P + 2 * q, 2), v(vACC + 32 * fb + 16 * tb + 8 * p + 2 * q, 2), v(st, 2), v(P + 2 * q, 2)))
                for q in range(4): I.append('v_pk_mul_f32 %s, %s, %s' % (v(Z + 2 * q, 2), v(P + 2 * q, 2), v(P + 2 * q, 2)))
                for q in range(4): I.append('v_pk_fma_f32 %s, %s, %s, %s op_sel:[0,0,1] op_sel_hi:[1,0,1]' % (v(Z + 2 * q, 2), v(Z + 2 * q, 2), v(vK, 2), v(vK, 2)))
                for q in range(4): I.append('v_pk_mul_f32 %s, %s, %s' % (v(Z + 2 * q, 2), v(Z + 2 * q, 2), v(P + 2 * q, 2)))
                for q in range(8): I.append('v_exp_f32 %s, %s' % (v(Z + q), v(Z + q)))
                for q in range(4): I.append('v_pk_add_f32 %s, %s, 1.0 op_sel_hi:[1,0]' % (v(Z + 2 * q, 2), v(Z + 2 * q, 2)))
                for q in range(8): I.append('v_rcp_f32 %s, %s' % (v(Z + q), v(Z + q)))
                for q in range(4): I.append('v_pk_mul_f32 %s, %s, %s' % (v(Z + 2 * q, 2), v(Z + 2 * q, 2), v(P + 2 * q, 2)))
                for q in range(4): I.append('v_cvt_pk_bf16_f32 %s, %s, %s' % (v(Oo + q), v(Z + 2 * q), v(Z + 2 * q + 1)))
                ex = take(stash, per) if (n or opt('iall', 7) < 8) else []
                if n == 5: ex = u_loads() + ex
                put(interleave(I, ex, 6, 44 // max(1, len(ex)), 1))
                e('buffer_store_dwordx4 %s, %s, %s, s%d offen offset:%d sc1' % (v(Oo, 4), v(vHS), srd(SH), sHS0 + fb, 512 * p), tag='h%d' % fb)
                if p == 1 and tb == 0: e('s_add_u32 s%d, s%d, %d' % (sHS0 + fb, sHS0 + fb, 2 * 55296))
                if n == 0:
                    if opt('iall', 7) == 9: poll(212, 1, FAALL_LOAD, 'faall', val=3)
                    e.barrier()
                    stamp(35)
                    for j in range(4):
                        e('ds_read_b128 %s, %s offset:%d' % (v(vB[1] + 4 * j, 4), v(vBCR), 32 * j))
                        e('ds_read_b128 %s, %s offset:%d' % (v(vC[1] + 4 * j, 4), v(vBCR), 512 + 32 * j))
                if n == 3: stamp(36)
                n += 1
    bench_end('gelu')

def u_loads():
    return [('buffer_load_dwordx4 v[184:187], %s, %s, s%d offen sc1' % (v(vUG), srd(SWS), sUL0), 'ul'),
            ('buffer_load_dwordx4 v[188:191], %s, %s, s%d offen sc1' % (v(vUG), srd(SWS), sUL1), 'ul')]

cid = [0]
def conv(koff, pre, inner, zero_pad=True):
    if zero_pad:
        for k in range(4): e('v_mov_b32 v%d, 0' % (16 + k))
        e('ds_write_b128 %s, v[16:19]' % v(vZP))
    e.barrier()
    for k in range(9): e('ds_read_u16 %s, %s offset:%d' % (v(30 + k), v(vGI + k), koff))
    put(pre)
    e('ds_write_b128 %s, v[184:187]' % v(vUL))
    e('ds_write_b128 %s, v[188:191] offset:512' % v(vUL))
    for k in range(4): e('v_lshl_or_b32 %s, %s, 16, %s' % (v(40 + k), v(31 + 2 * k), v(30 + 2 * k)))
    e('ds_write_b128 %s, v[40:43]' % v(vRW))
    for k in range(4): e('v_lshl_or_b32 %s, %s, 16, %s' % (v(44 + k), v(32 + 2 * k), v(31 + 2 * k)))
    e('ds_write_b128 %s, v[44:47] offset:2112' % v(vRW))
    e.barrier()
    stamp(8)
    bench_begin('conv%d' % cid[0])
    e('s_cmp_eq_u32 s%d, 1' % sO)
    def rd8(dst, P):
        b, o = (vR8, P // 2) if P // 2 + 3 <= 255 else (vR8h, P // 2 - 256)
        return ['ds_read2_b32 %s, %s offset0:%d offset1:%d' % (v(dst, 2), v(b), o, o + 1),
                'ds_read2_b32 %s, %s offset0:%d offset1:%d' % (v(dst + 2, 2), v(b), o + 2, o + 3)]
    def rd4(dst, P):
        o = P // 2 - 256
        return ['ds_read2_b32 %s, %s offset0:%d offset1:%d' % (v(dst, 2), v(vR4), o, o + 1)]
    def ub(dst, off): return 'ds_read_b128 %s, %s offset:%d' % (v(dst, 4), v(vUB), 2 * (off + 16) + 512)
    vF, vO = 16, 32
    SA = opt('sa', 13)
    roleB, join = lab('roleB'), lab('convjoin')
    e('s_cbranch_scc1 %s' % roleB)
    snap = e.snapshot()
    items = inner()
    def spread(M, n_mfma):
        out, k, c = [], 0, 0
        for x in M:
            out.append(x)
            if isinstance(x, str) and x.startswith('v_mfma'):
                c += 1
                while k < len(items) and c * (len(items) + 1) >= (k + 1) * n_mfma * opt('cspan', 100) // 100: out.append(items[k]); k += 1
        return out + items[k:]
    acc = lambda b: (vF + 4 * b) if b < 4 else (vO + 4 * (b - 4))
    AF, RB, NR = 48, 48 + 4 * (SA + 1), 10
    seen = set()
    def mm(b, A, B):
        d = v(acc(b), 4); c = d if b in seen else '0'; seen.add(b)
        return 'v_mfma_f32_16x16x32_bf16 %s, %s, %s, %s' % (d, v(A, 4), v(B, 4), c)
    ws = list(range(-7, 57))
    aord = []
    for w in ws:
        for b in range(8):
            if 0 <= 8 * b - w <= SA and 8 * b - w not in aord: aord.append(8 * b - w)
    AH = 8
    pre_ = [ub(RB + 4 * (k % NR), 32 * ws[k] - 16) for k in range(AH)]
    pend = [x for s in aord for x in rd8(AF + 4 * s, 512 - 32 * s)]
    put(take(pend, 2)); put(pre_[0]); put(take(pend, 2)); put(pre_[1]); put(take(pend, 2)); put(pre_[2:4]); put(take(pend, 4)); put(pre_[4:])
    M = []
    for k, w in enumerate(ws):
        grp = [mm(b, AF + 4 * (8 * b - w), RB + 4 * (k % NR)) for b in range(8) if 0 <= 8 * b - w <= SA]
        M.append(grp[0]); M += take(pend, 3)
        if k + AH < len(ws): M.append(ub(RB + 4 * ((k + AH) % NR), 32 * ws[k + AH] - 16))
        M += grp[1:]
    put(spread(M, sum(1 for x in M if x.startswith('v_mfma'))))
    for k in range(4): e('ds_write_b128 %s, %s offset:%d' % (v(vXW), v(vO + 4 * k, 4), XCH + 1024 * k))
    endA = [dict(x) for x in e.vm]
    e.wait_lg0()
    e('s_branch %s' % join)
    e.restore(snap)
    e.raw(roleB + ':')
    acc = lambda b: (vO + 4 * b) if b < 4 else (vF + 4 * (b - 4))
    seen = set()
    hs = list(range(SA + 1, 16))
    AF, CR, KB, RB, TT, PP = 48, 64, 68, 108, 140, (164, 176)
    b5, b3a, b3b, b9, b7 = [vBAND + 4 * k for k in range(5)]
    def box(t, A, B): return 'v_mfma_f32_16x16x32_bf16 %s, %s, %s, 0' % (v(TT + 4 * t, 4), v(A, 4), v(B, 4))
    def cvt(t, pp): return 'v_cvt_pk_bf16_f32 %s, %s, %s' % (v(pp + t), v(TT + 2 * t), v(TT + 2 * t + 1))
    steps = []
    def tails(n):
        s1 = []; pp = PP[n & 1]
        for D in range(4):
            if D < 3 and n + 2 + D < 8: s1 += [('mr', n + 2 + D, pp, KB + 4 * D), ('mr', n + 2 + D, pp + 4, KB + 12 + 4 * D)]
            if n < 4 and n + 4 + D < 8: s1.append(('mr', n + 4 + D, pp + 8, KB + 24 + 4 * D))
        return s1
    for n in range(6):
        U16, U24 = ('u', 256 * n - 16), ('u', 256 * n - 24)
        s1 = [('box', 0, U24, b5), ('box', 1, U16, b3a), ('box', 2, U16, b5), ('box', 3, U16, b3b)]
        if n < 4: s1 += [('box', 4, U24, b9), ('box', 5, U16, b7)]
        s2 = [('mm', n + 2, AF + 12, U16)]
        for s in hs: s2.append(('mm', n + 1, AF + 4 * (s - 13), ('u', 32 * (8 * (n + 1) - s) - 16)))
        if n < 5: s2.append(('mm', n + 3, CR, ('u', 256 * (n - 1) - 8)))
        if n == 5:
            for s in hs: s2.append(('mm', 7, AF + 4 * (s - 13), ('u', 32 * (56 - s) - 16)))
        s2 += tails(n - 1) if n > 0 else []
        cv = [('cvt', t, PP[n & 1]) for t in range(12 if n < 4 else 8)]
        body = []
        for k, x in enumerate(s2):
            body.append(x)
            if k >= 1: body += take(cv, 2)
        steps += s1 + body + cv
    steps += tails(5)
    uses = []
    for x in steps:
        for y in x:
            if isinstance(y, tuple) and y not in uses: uses.append(y)
    NR = 8
    reg = {u: RB + 4 * (k % NR) for k, u in enumerate(uses)}
    last = {u: max(k for k, x in enumerate(steps) if u in x) for u in uses}
    put([ub(reg[u], u[1]) for u in uses[:2]])
    pend = rd8(AF + 12, 0) + [x for s in hs for x in rd8(AF + 4 * (s - 13), 512 - 32 * s)] + rd8(CR, T.BC)
    put(take(pend, 4))
    put([ub(reg[u], u[1]) for u in uses[2:6]])
    for k in range(4): e('v_mov_b32 %s, 0' % v(vO + k))
    for D in range(4):
        if D < 3: pend += rd4(KB + 4 * D, T.B0 + 16 * (2 - D)) + rd4(KB + 4 * D + 2, T.B1 + 16 * (2 - D)) + rd4(KB + 12 + 4 * D, T.B2 + 16 * (2 - D)) + rd4(KB + 12 + 4 * D + 2, T.B3 + 16 * (2 - D))
        pend += rd4(KB + 24 + 4 * D, T.B4 + 16 * (3 - D)) + rd4(KB + 24 + 4 * D + 2, T.B5 + 16 * (3 - D))
    nxt = 6
    M = []
    for k, x in enumerate(steps):
        if x[0] == 'cvt': M.append(cvt(x[1], x[2])); continue
        if x[0] == 'box': M.append(box(x[1], reg[x[2]], x[3]))
        elif x[0] == 'mm': M.append(mm(x[1], x[2], reg[x[3]]))
        else: M.append(mm(x[1], x[2], x[3]))
        M += take(pend, 2)
        if nxt < len(uses) and (nxt < NR or last[uses[nxt - NR]] <= k): M.append(ub(reg[uses[nxt]], uses[nxt][1])); nxt += 1
    assert nxt == len(uses) and not pend
    put(spread(M, sum(1 for x in M if x.startswith('v_mfma'))))
    for k in range(4): e('ds_write_b128 %s, %s offset:%d' % (v(vXW), v(vO + 4 * k, 4), XCH + 1024 * k))
    endB = [dict(x) for x in e.vm]
    e.wait_lg0()
    m_ = min(len(endA), len(endB))
    assert m_ == 0 or endA[-m_:] == endB[-m_:]
    e.vm = endA if len(endA) > len(endB) else endB
    e.raw(join + ':')
    bench_end('conv%d' % cid[0]); cid[0] += 1

def conv_finish():
    vF, vO = 16, 32
    e('s_barrier')
    stamp(9)
    for k in range(4): e('ds_read_b128 %s, %s offset:%d' % (v(vO + 4 * k, 4), v(vXR), XCH + 1024 * k))
    for p in range(2):
        X = 48 + 4 * p
        for k in range(4 * p, 4 * p + 4): e('v_pk_add_f32 %s, %s, %s' % (v(vF + 2 * k, 2), v(vF + 2 * k, 2), v(vO + 2 * k, 2)))
        for k in range(4): e('v_cvt_pk_bf16_f32 %s, %s, %s' % (v(X + k), v(vF + 8 * p + 2 * k), v(vF + 8 * p + 2 * k + 1)))
        e('v_permlane16_swap_b32 %s, %s' % (v(X), v(X + 2)))
        e('v_permlane16_swap_b32 %s, %s' % (v(X + 1), v(X + 3)))
        e('buffer_store_dwordx4 %s, %s, %s, s%d offen offset:%d sc1' % (v(X, 4), v(vYO), srd(SWS), sYS, 1024 * p), tag='y')
```

```python
from g2b import *

vA2, vH, vHO, vY = 16, 96, 222, 200
RING = opt('ring', 4)
aH0 = 192
LATE = list(range(64, 70)) + list(range(48, 56))
def split_stash():
    S = stash_loads()
    early = S[:48] + S[56:64]
    def fix(g, idx):
        j = idx // 5
        m = 's_mul_i32 s%d, s%d, 5' % (sS0 + (j & 1), sKS + j)
        return g if isinstance(g[0], str) else [m] + g
    early[48] = fix(early[48], 56)
    late = [S[i] for i in LATE]
    late[0] = fix(late[0], 64); late[6] = fix(late[6], 48)
    return early, late
def hreg(j, tb): return a(aH0 + 16 * j + 4 * tb, 4) if j < 2 else v(vH + 16 * (j % RING) + 4 * tb, 4)
def hl(j): return [('buffer_load_dwordx4 %s, %s, %s, s%d offen sc1' % (hreg(j, tb), v(vHO + tb), srd(SH), sKS + j), 'h%d' % (100 + j)) for tb in range(4)]
FH_LOAD = 'buffer_load_dword %s, %s, %s, s%d offen sc1' % (v(vPL), v(vPA), srd(SWS), sFHP)
def g2_pre():
    A = [mk_srd(SH, P_WS, 4 * 55296, sHLA) + ['v_min_u32 %s, 27, v0' % v(vPA), 'v_lshlrev_b32 %s, 7, %s' % (v(vPA), v(vPA))],
         ['v_add_u32 %s, %d, v1' % (v(vHO + tb), tb * 55296) for tb in range(4)]]
    return A, (FH_LOAD, 'fh'), (lambda: poll(vPL, 1, FH_LOAD, 'fh0')), hl(0) + hl(1)

def gemm2(late):
    acc = lambda db, tb: vA2 + 16 * db + 4 * tb
    stamp(10)
    vFYA, vYA, vRWr = 226, 227, 195
    vGO, vLO = 8, 192
    sFYP, sB2 = sHS0, sHS1
    stream = ['s_add_u32 s%d, s%d, %d' % (sFHP, sFHP, FH1), 's_mul_i32 s%d, s%d, 160' % (sB2, sN80), 's_lshr_b32 s68, s%d, 2' % sXCD, 's_mul_i32 s68, s68, 81920',
              's_lshl_b32 s%d, s%d, 6' % (sFYP, sB2), 's_add_u32 s%d, s%d, s68' % (sFYP, sFYP), 's_add_u32 s%d, s%d, %d' % (sFYP, sFYP, FY), 'v_min_u32 v13, 39, v0', 'v_lshlrev_b32 %s, 8, v13' % v(vFYA),
              'v_and_b32 v13, 15, v0', 'v_lshrrev_b32 v14, 4, v0', 'v_lshlrev_b32 v15, 12, v13', 'v_lshl_add_u32 %s, v14, 4, v15' % v(vYA),
              'v_mul_u32_u24 v13, 336, v13', 'v_lshl_add_u32 v13, v14, 4, v13', 's_mul_i32 s68, s%d, 21504' % sW, 'v_add_u32 %s, s68, v13' % v(vRWr),
              's_mul_i32 s69, s%d, %d' % (sW, 16 * 336)]
    for i in range(3):
        stream += ['v_add_u32 v13, %d, v0' % (64 * i), 'v_mul_u32_u24 v14, 6554, v13', 'v_lshrrev_b32 v14, 16, v14',
                   'v_mul_u32_u24 v15, 10, v14', 'v_sub_u32 v15, v13, v15', 'v_lshl_add_u32 %s, v15, 4, s%d' % (v(5 + i), sB2),
                   'v_mul_u32_u24 v13, 1280, v14', 'v_lshl_add_u32 %s, v15, 4, v13' % v(vGO + i),
                   'v_mul_u32_u24 v13, 336, v14', 'v_lshl_add_u32 v13, v15, 5, v13', 'v_add_u32 %s, s69, v13' % v(vLO + i)]
    stream += sels()
    fy = 'buffer_load_dword v2, %s, %s, s%d offen sc1\n    buffer_load_dword v3, %s, %s, s%d offen offset:128 sc1' % ((v(vFYA), srd(SWS), sFYP) * 2)
    yl = ['buffer_load_dwordx4 %s, %s, %s, s%d offen sc1' % (v(vY, 4), v(vYA), srd(SWS), sYA),
          'buffer_load_dwordx4 %s, %s, %s, s%d offen offset:64 sc1' % (v(vY + 4, 4), v(vYA), srd(SWS), sYA),
          'buffer_load_dwordx4 %s, %s, %s, s%d offen sc1' % (v(vY + 8, 4), v(vYA), srd(SWS), sYB)]
    def mf(j, db, tb):
        d = v(acc(db, tb), 4)
        return 'v_mfma_f32_16x16x32_bf16 %s, %s, %s, %s' % (d, stash_reg(j, db), hreg(j, tb), '0' if j == 0 else d)
    NT = opt('nt', 3)
    LA = opt('la', 2)
    assert RING > max(LA, NT) - 0
    xr, br = 160, 172
    assert vH + 16 * RING <= xr
    issued = 2
    jfy, jyc = opt('jfy', 6), opt('jyc', 8)
    for j in range(14 - NT):
        bench_begin('g2_%d' % j)
        M = [mf(j, db, tb) for tb in range(4) for db in range(5)]
        vm = []
        if j == 1: vm.append([lambda: e.wait_vm('y'), lambda: flag_store(sFY)])
        if j == opt('jh1', 2): vm.append((FH_LOAD, 'fh'))
        if j == 7 - LA: poll(vPL, 1, FH_LOAD, 'fh1')
        hi = min(14, j + LA + 1 + (NT - 1 if j == 13 - NT else 0))
        while issued < hi: vm += hl(issued); issued += 1
        if j == 0: vm += take(late, 0)
        elif j >= 2: vm += take(late, 2)
        if j == jfy: vm.append((fy, 'fy'))
        if j == jyc:
            e('v_and_b32 v2, v2, v3')
            e('v_cmp_ne_u32 s[70:71], 1, v2')
            vm += [(y, 'yl') for y in yl]
        if j == 9: vm += [('buffer_load_dwordx4 %s, %s, %s, s%d offen' % (v(xr + 4 * i, 4), v(vGO + i), srd(SX), sOUT), 'fx') for i in range(3)]
        if j == 10: vm += [('global_load_dwordx4 %s, %s, %s' % (v(br + 4 * i, 4), v(5 + i), sp(P_B2)), 'fb') for i in range(3)]
        put(sched(M, [], [], vm, stream, 2, 2))
        bench_end('g2_%d' % j)
        if j in (1, 5): stamp(14 + (j == 5))
        if j == 7: stamp(37)
    assert not late and not stream and issued == 14, (late, stream, issued)
    stamp(11)
    ok = lab('y_ok')
    e('s_cmp_eq_u64 s[70:71], 0')
    e('s_cbranch_scc1 %s' % ok)
    snap = e.snapshot()
    e.raw('    v_mov_b32 v2, 0')
    poll(2, 2, fy, 'fy')
    for y in yl: e.raw('    ' + y)
    e.raw('    s_waitcnt vmcnt(0)')
    e.restore(snap)
    e.raw(ok + ':')
    e.wait_vm('yl')
    stamp(38)
    labs = [lab('yv') for _ in range(5)]
    snap = e.snapshot()
    for w in range(4):
        e.restore(snap)
        e.raw(labs[w] + ':')
        if w < 3:
            e('s_cmp_lg_u32 s%d, %d' % (sW, w)); e('s_cbranch_scc1 %s' % labs[w + 1])
        for tb in range(4):
            d = v(acc(w, tb), 4)
            e('v_mfma_f32_16x16x32_bf16 %s, %s, %s, %s' % (d, v(vY + 4 * (tb >> 1), 4), v(vSEL + 4 * (tb & 1), 4), d))
        d = v(acc(4, w), 4)
        e('v_mfma_f32_16x16x32_bf16 %s, %s, %s, %s' % (d, v(vY + 8, 4), v(vSEL + 4 * (w & 1), 4), d))
        if w < 3: e('s_branch %s' % labs[4])
    e.raw(labs[4] + ':')
    e('s_barrier')
    XF = 196
    un = []
    for i in range(3):
        for k in range(4):
            d = XF + 8 * i + 2 * k
            un += ['v_lshlrev_b32 v%d, 16, %s' % (d, v(xr + 4 * i + k)), 'v_and_b32 v%d, 0xffff0000, %s' % (d + 1, v(xr + 4 * i + k)),
                   'v_lshlrev_b32 v13, 16, %s' % v(br + 4 * i + k), 'v_and_b32 v14, 0xffff0000, %s' % v(br + 4 * i + k),
                   'v_add_f32 v%d, v%d, v13' % (d, d), 'v_add_f32 v%d, v%d, v14' % (d + 1, d + 1)]
    prev = []
    for tb in range(4):
        M = [mf(j, db, tb) for j in range(14 - NT, 14) for db in range(5)]
        if tb == 0: put(M[:2]); M = M[2:]
        put(sched(M[:2], [], [], [], un, 2, 2) + sched(M[2:], [], [], prev, un, 2, 2))
        prev = ['ds_write_b128 %s, %s offset:%d' % (v(vRWr), v(acc(db, tb), 4), RED + tb * 5376 + db * 64) for db in range(5)]
    put(un)
    put(prev)
    e.barrier()
    stamp(12)
    PR = 16
    for i in range(3):
        for src in range(4):
            for h in range(2):
                e('ds_read_b128 %s, %s offset:%d' % (v(PR + 32 * i + 8 * src + 4 * h, 4), v(vLO + i), RED + src * 21504 + 16 * h))
    for i in range(3):
        for src in range(4):
            for k in range(4):
                e('v_pk_add_f32 %s, %s, %s' % (v(XF + 8 * i + 2 * k, 2), v(XF + 8 * i + 2 * k, 2), v(PR + 32 * i + 8 * src + 2 * k, 2)))
        for k in range(4): e('v_cvt_pk_bf16_f32 %s, %s, %s' % (v(120 + 4 * i + k), v(XF + 8 * i + 2 * k), v(XF + 8 * i + 2 * k + 1)))
        if i == 2: e('s_mov_b32 exec_hi, 0')
        e('buffer_store_dwordx4 %s, %s, %s, s%d offen' % (v(120 + 4 * i, 4), v(vGO + i), srd(SO), sOUT), tag='out')
    e('s_mov_b32 exec_hi, -1')
    if opt('chase', 0):
        e('s_cmp_lg_u32 s2, 0'); e('s_cbranch_scc1 L_end')
        e('s_load_dwordx2 s[68:69], s[0:1], %d' % (56 if opt('chase', 0) == 1 else 112))
        e('v_mov_b32 v13, %d' % (0 if opt('chase', 0) == 1 else 0x8000000)); e('s_mov_b32 s70, %d' % opt('chn', 128))
        e('s_waitcnt vmcnt(0) lgkmcnt(0)')
        e.raw('L_chase:')
        e('global_load_dword v14, v13, s[68:69]'); e('s_waitcnt vmcnt(0)'); e('v_and_b32 v14, 0, v14'); e('v_add3_u32 v13, v13, v14, 64'); e('v_add_u32 v13, 16320, v13')
        e('s_sub_u32 s70, s70, 1'); e('s_cmp_lg_u32 s70, 0'); e('s_cbranch_scc1 L_chase')
        e('s_branch L_end')
    if OPT['stamps']:
        stamp(13)
        e('s_lshl_b32 s68, s2, 2'); e('s_add_u32 s68, s68, s%d' % sW); e('s_lshl_b32 s68, s68, 8'); e('s_add_u32 s68, s68, %d' % STAMP)
        e('v_lshlrev_b32 v13, 2, v0')
        e('buffer_store_dword %s, v13, %s, s68 offen' % (v(vSTAMP), srd(SWS)))
        if opt('dbg', 0):
            e('v_readlane_b32 s68, %s, 0' % v(vSTAMP)); e('s_not_b32 s68, s68'); e('v_mov_b32 v14, s68'); e('v_mov_b32 v15, s%d' % sST)
            e('v_mov_b32 v13, 8'); e('s_mov_b64 exec, 1')
            e('global_atomic_umax v13, v14, %s' % sp(P_DBG)); e('global_atomic_umax v13, v15, %s offset:4' % sp(P_DBG))
            e('s_lshl_b32 s68, s2, 2'); e('s_add_u32 s68, s68, s%d' % sW); e('s_cmp_eq_u32 s68, %d' % (4 * opt('dbg', 0)))
            e('s_cselect_b64 exec, 0x3fff, 0'); e('v_lshlrev_b32 v13, 2, v0')
            e('s_cbranch_execz L_end')
            e('s_mov_b64 exec, 0x3ffc'); e('global_store_dword v13, %s, %s offset:8' % (v(vSTAMP), sp(P_DBG)))

def last_conv_items(stash, fh1):
    A, ld, chk, h = g2_pre()
    n = len(stash); k1 = n * opt('c1', 45) // 100; k2 = n * opt('c2', 70) // 100
    it = take(stash, k1 // 2) + (fh1 or []) + take(stash, k1 - k1 // 2) + A + [ld] + take(stash, k2 - k1)
    rest = take(stash, len(stash))
    return it + rest + [chk] + h

def full_path():
    prologue2('f')
    e('s_add_u32 s%d, s%d, s%d' % (sPAIR, sPAIR, sJ))
    dq = []
    for st in range(10):
        h, P = g1_dma(st)
        dq += [(st, h if i == 0 else None, p) for i, p in enumerate(P)]
    def dma(n): return [([h] if h else []) + [p[0], p[1]] for (_, h, p) in take(dq, n)]
    put(dma(opt('n0', 8)))
    stamp(30)
    put(late_setup())
    put(ln_addr()); put(g1_read_addr()); put(gelu_addr())
    put(bands())
    put(pack_addr()); put(pack_raddr())
    scout('f', 2)
    layernorm(dma(opt('n1', 3)), dma(opt('n2', 3)), [(READY_LOAD, 'rdy')] + param_loads(sPAIR) + [LOAD_B] + unit_src(sPAIR, 2) + dma(opt('n3', 2)))
    stamp(1)
    early, late = split_stash()
    gemm1(early, dq)
    gelu(early)
    stamp(6)
    def mid():
        e.wait_vm('h0'); flag_store(sFH); e('s_add_u32 s%d, s%d, %d' % (sFH, sFH, FH1))
    ktail(0, [mid])
    stamp(7)
    fh1 = [[lambda: e.wait_vm('h1'), lambda: flag_store(sFH)]]
    conv(0, take(early, 3), lambda: last_conv_items(early, fh1))
    conv_finish()
    return e.snapshot(), late

def spare_path():
    e.raw('L_spare:')
    prologue2('s')
    e('s_sub_u32 s68, s%d, 28' % sJ); e('s_mul_i32 s69, s68, 3'); e('s_add_u32 s%d, s%d, s69' % (sPAIR, sPAIR)); e('s_add_u32 s%d, s%d, 28' % (sPAIR, sPAIR))
    put(late_setup())
    nc = lab('noclear')
    e('s_cmp_lg_u32 s2, 248'); e('s_cbranch_scc1 %s' % nc)
    r = lambda s: e.raw('    ' + s)
    r('v_mov_b32 v16, 0'); r('v_lshlrev_b32 v18, 7, v0'); r('s_lshl_b32 s70, s%d, 13' % sW); r('s_add_u32 s70, s70, %d' % FA)
    r('buffer_store_dword v16, v18, %s, s70 offen sc1' % srd(SWS))
    r('s_waitcnt vmcnt(0)'); r('s_barrier'); r('v_mov_b32 v17, 1'); r('s_mov_b64 exec, 1')
    r('global_store_dword v16, v17, %s sc1' % sp(P_DBG)); r('s_mov_b64 exec, -1')
    e.raw(nc + ':')
    put(pack_addr()); put(unit_src(71, 2)); put([list(p) for p in pack_dma(0, 71)])
    e('s_add_u32 s70, s2, 32'); put(unit_src(71, 70)); put([list(p) for p in pack_dma(1, 71)])
    put(param_loads(sPAIR, vPAR)); e('s_add_u32 s%d, s%d, 1' % (sPAIR, sPAIR))
    put(param_loads(sPAIR, 88, 102)); e('s_add_u32 s%d, s%d, 1' % (sPAIR, sPAIR))
    put(param_loads(sPAIR, 94, 104))
    if not opt('latesc', 0): e(LOAD_B)
    if opt('r1pos', 0) == 1: scout('s', 1)
    stamp(28)
    put(ln_addr()); put(pack_raddr()); put(tab_loads()); put(bands())
    scout('s', 2)
    layernorm([], [], [(READY_LOAD, 'rdy')], units=2)
    stamp(1)
    put(own_clear(3)); put(conv_addr(KTAB_SP)); put(w2_setup())
    for k in range(6): e('v_lshl_or_b32 v%d, v%d, 16, v%d' % (29 + k, 94 + k, 88 + k))
    e('s_mul_i32 s68, s%d, %d' % (sCH, CHP)); e('s_lshl_b32 s69, s%d, 8' % sO); e('s_add_u32 m0, s68, s69')
    early, late = split_stash()
    for it in range(3):
        if it == 1:
            for k in range(6): e('v_and_b32 %s, 0xffff, v%d' % (v(vPAR + k), 29 + k))
        if it == 2:
            for k in range(6): e('v_lshrrev_b32 %s, 16, v%d' % (v(vPAR + k), 29 + k))
        put(kgen_setup(True))
        rows = kgen_rows(True, lambda r: ['ds_write_addtid_b32 %s offset:%d' % (v(vKV + r), r * 528)])
        if it == 2: rows = rows[:100] + FAALL_ADDR + [(FAALL_LOAD, 'faall')] + rows[100:]
        put(rows)
        if it == 0: e.wait_vm(('u', 'pks'))
        if it == 2: poll(212, 1, FAALL_LOAD, 'faall', val=3)
        e.barrier()
        if it == 0: fa_publish(3)
        ktail(3072 * it, u_loads() + take(early, 4) if it == 2 else [])
        if it < 2: e.barrier()
        stamp(3 + it)
    stamp(7)
    for it in range(3):
        def nxt():
            L = take(early, opt('spc', 18))
            L = L[:2] + [['s_add_u32 s%d, s%d, 32' % (sUL0, sUL0), 's_add_u32 s%d, s%d, 32' % (sUL1, sUL1)]] + L[2:]
            if it: L = L[:6] + [[lambda: e.wait_vm('y'), lambda: flag_store(sFY), 's_add_u32 s%d, s%d, 256' % (sFY, sFY)]] + L[6:]
            return L
        def lastc():
            return last_conv_items(early, [[lambda: e.wait_vm('y'), lambda: flag_store(sFY), 's_add_u32 s%d, s%d, 256' % (sFY, sFY)]])
        conv(3072 * it, [], nxt if it < 2 else lastc, zero_pad=(it == 0))
        if it < 2: put(u_loads())
        conv_finish()
        if it < 2: e('s_add_u32 s%d, s%d, 8192' % (sYS, sYS))
    e('s_branch L_gemm2')
    mark('send')
    return e.snapshot()

def addresses(lines):
    import subprocess, re
    txt = '.amdgcn_target "amdgcn-amd-amdhsa--gfx950"\n.text\n'
    undef = sorted(set(re.findall(r'L_hop_\w+', '\n'.join(lines))))
    body = []
    for k, l in enumerate(lines): body.append('A_%d:\n%s' % (k, l))
    txt += '\n'.join(body) + '\n' + ''.join('%s:\n' % u for u in undef) + 'L_tab:\nL_tab_end:\nL_sc:\n'
    open('_a.s', 'w').write(txt)
    subprocess.check_call(['clang', '-x', 'assembler', '-target', 'amdgcn-amd-amdhsa', '-mcpu=gfx950', '-c', '_a.s', '-o', '_a.o'])
    out = subprocess.check_output(['llvm-objdump', '-t', '_a.o']).decode()
    ad = {}
    for l in out.splitlines():
        p = l.split()
        if p and p[-1].startswith('A_'): ad[int(p[-1][2:])] = int(p[0], 16)
    return [ad[k] for k in range(len(lines))]

def plant_hops(lines):
    if not opt('scout', 1): return lines
    ad = addresses(lines)
    pos = {l[:-1]: k for k, l in enumerate(lines) if l.endswith(':')}
    STEP = opt('hop', 1000)
    banned, inside = set(), False
    for k, l in enumerate(lines):
        if l.strip() == 's_mov_b64 exec, 0': inside = True
        if inside: banned.add(k)
        if l.strip() == 's_mov_b64 exec, -1': inside = False
    def points(a, b, skip=0):
        out, nxt = [], ad[a] + skip
        for k in range(a, b):
            if ad[k] >= nxt and k not in banned and not lines[k].endswith(':') and not lines[k].startswith(';'): out.append(k); nxt = ad[k] + STEP
        return out
    g2 = points(pos['L_gemm2'], pos['L_end'])
    plan = {}
    f = points(pos['L_ret_f_0'], pos['L_gemm2'], STEP) + g2
    sp_ = points(pos['L_ret_s_0'], pos['L_mk_send'], STEP) + g2
    ins = {}
    for role, pts in (('f', f), ('s', sp_)):
        n0, n1, n2 = opt('h0', 1), opt('h1', 2), opt('h2', 2)
        rounds = [take(pts, 4 * n0)]
        if role == 'f' and opt('prio', 1):
            g = pos['L_mk_gelu']; c = pos['L_mk_g1_%d' % opt('g1w', 3)]
            pts = [p for p in pts if p < c] + [p for p in pts if p >= g] + [p for p in pts if c <= p < g]
        rounds += [take(pts, 4 * n1), take(pts, 4 * n2)]
        print(role, 'unwarmed KB', len(pts))
        for r, P in enumerate(rounds):
            n = (len(P) + 3) // 4
            for w in range(4):
                chain = P[w * n:(w + 1) * n]
                ret = 'L_ret_%s_%d' % (role, r)
                first = 'L_hop_%s_%d_%d' % (role, r, w)
                if not chain: ins.setdefault(pos[ret], []).append(first + ':'); continue
                for q, k in enumerate(chain):
                    me = first if q == 0 else '%s_%d' % (first, q)
                    nx = ret if q == len(chain) - 1 else '%s_%d' % (first, q + 1)
                    ins.setdefault(k, []).extend([me + ':', '    s_cbranch_execz %s' % nx])
    out = []
    for k, l in enumerate(lines):
        out += ins.get(k, []); out.append(l)
    return out

def main():
    prologue()
    snap = e.snapshot()
    sf, late = full_path()
    mainout = e.out
    e.out = []
    e.restore(snap)
    ss = spare_path()
    spout = e.out
    e.out = mainout
    m_ = min(len(sf[0]), len(ss[0]))
    k = 0
    while k < m_ and sf[0][-1 - k] == ss[0][-1 - k]: k += 1
    assert k >= 10, k
    allregs = set()
    for x in sf[0][:len(sf[0]) - k] + ss[0][:len(ss[0]) - k]: allregs |= x['regs']
    e.restore(sf)
    e.vm = [dict(regs=allregs, tag='old', opt=True)] + sf[0][len(sf[0]) - k:]
    e.defd &= ss[3]
    e.raw('L_gemm2:')
    gemm2(late)
    e.raw('L_end:')
    e('s_endpgm')
    e.out = plant_hops(e.out + spout)
    hdr = open('parallel_sum__ssm_conv_s4d__mixer_channel_mlp__prompt.s.ref').read().split('; Override launch')[0]
    s = hdr + '; @launch grid=(256,1,1) block=(256,1,1) lds=%d\n' % LDS_BYTES
    s += '.amdgcn_target "amdgcn-amd-amdhsa--gfx950"\n.text\n.globl %s\n.p2align 8\n.type %s,@function\n%s:\n' % (KN, KN, KN)
    s += e.text()
    s += '.p2align 7\n.type L_tab,@object\nL_tab:\n'
    tab = T.gather_table()
    for k in range(0, len(tab), 8): s += '.long ' + ', '.join('0x%08x' % x for x in tab[k:k + 8]) + '\n'
    s += 'L_tab_end:\n.size L_tab, L_tab_end-L_tab\n.p2align 7\n.type L_sc,@object\nL_sc:\n'
    tab = scalar_table()
    for k in range(0, len(tab), 16): s += '.long ' + ','.join('%d' % x for x in tab[k:k + 16]) + '\n'
    s += 'L_sc_end:\n.size L_sc, L_sc_end-L_sc\n'
    s += '''.section .rodata,"a"
.p2align 6
.amdhsa_kernel %s
  .amdhsa_next_free_vgpr 512
  .amdhsa_next_free_sgpr 102
  .amdhsa_accum_offset 256
  .amdhsa_group_segment_fixed_size 0
  .amdhsa_kernarg_size 120
  .amdhsa_user_sgpr_count 2
  .amdhsa_user_sgpr_kernarg_segment_ptr 1
  .amdhsa_system_sgpr_workgroup_id_x 1
  .amdhsa_float_denorm_mode_32 3
.end_amdhsa_kernel
''' % KN
    open(sys.argv[1], 'w').write(s)
    print('instructions', e.nins, 'nops', e.nnop)

main()
```

```python
from g2b import *

vA2, vH, vHO, vY = 16, 96, 222, 200
RING = opt('ring', 4)
aH0 = 192
LATE = list(range(64, 70)) + list(range(48, 56))
def split_stash():
    S = stash_loads()
    early = S[:48] + S[56:64]
    def fix(g, idx):
        j = idx // 5
        m = 's_mul_i32 s%d, s%d, 5' % (sS0 + (j & 1), sKS + j)
        return g if isinstance(g[0], str) else [m] + g
    early[48] = fix(early[48], 56)
    late = [S[i] for i in LATE]
    late[0] = fix(late[0], 64); late[6] = fix(late[6], 48)
    return early, late
def hreg(j, tb): return a(aH0 + 16 * j + 4 * tb, 4) if j < 2 else v(vH + 16 * (j % RING) + 4 * tb, 4)
def hl(j): return [('buffer_load_dwordx4 %s, %s, %s, s%d offen sc1' % (hreg(j, tb), v(vHO + tb), srd(SH), sKS + j), 'h%d' % (100 + j)) for tb in range(4)]
FH_LOAD = 'buffer_load_dword %s, %s, %s, s%d offen sc1' % (v(vPL), v(vPA), srd(SWS), sFHP)
def g2_pre():
    A = [mk_srd(SH, P_WS, 4 * 55296, sHLA) + ['v_min_u32 %s, 27, v0' % v(vPA), 'v_lshlrev_b32 %s, 7, %s' % (v(vPA), v(vPA))],
         ['v_add_u32 %s, %d, v1' % (v(vHO + tb), tb * 55296) for tb in range(4)]]
    return A, (FH_LOAD, 'fh'), (lambda: poll(vPL, 1, FH_LOAD, 'fh0')), hl(0) + hl(1)

def gemm2(late):
    acc = lambda db, tb: vA2 + 16 * db + 4 * tb
    stamp(10)
    vFYA, vYA, vRWr = 226, 227, 195
    vGO, vLO = 8, 192
    sFYP, sB2 = sHS0, sHS1
    stream = ['s_add_u32 s%d, s%d, %d' % (sFHP, sFHP, FH1), 's_mul_i32 s%d, s%d, 160' % (sB2, sN80), 's_lshr_b32 s68, s%d, 2' % sXCD, 's_mul_i32 s68, s68, 81920',
              's_lshl_b32 s%d, s%d, 6' % (sFYP, sB2), 's_add_u32 s%d, s%d, s68' % (sFYP, sFYP), 's_add_u32 s%d, s%d, %d' % (sFYP, sFYP, FY), 'v_min_u32 v13, 39, v0', 'v_lshlrev_b32 %s, 8, v13' % v(vFYA),
              'v_and_b32 v13, 15, v0', 'v_lshrrev_b32 v14, 4, v0', 'v_lshlrev_b32 v15, 12, v13', 'v_lshl_add_u32 %s, v14, 4, v15' % v(vYA),
              'v_mul_u32_u24 v13, 336, v13', 'v_lshl_add_u32 v13, v14, 4, v13', 's_mul_i32 s68, s%d, 21504' % sW, 'v_add_u32 %s, s68, v13' % v(vRWr),
              's_mul_i32 s69, s%d, %d' % (sW, 16 * 336)]
    for i in range(3):
        stream += ['v_add_u32 v13, %d, v0' % (64 * i), 'v_mul_u32_u24 v14, 6554, v13', 'v_lshrrev_b32 v14, 16, v14',
                   'v_mul_u32_u24 v15, 10, v14', 'v_sub_u32 v15, v13, v15', 'v_lshl_add_u32 %s, v15, 4, s%d' % (v(5 + i), sB2),
                   'v_mul_u32_u24 v13, 1280, v14', 'v_lshl_add_u32 %s, v15, 4, v13' % v(vGO + i),
                   'v_mul_u32_u24 v13, 336, v14', 'v_lshl_add_u32 v13, v15, 5, v13', 'v_add_u32 %s, s69, v13' % v(vLO + i)]
    stream += sels()
    fy = 'buffer_load_dword v2, %s, %s, s%d offen sc1\n    buffer_load_dword v3, %s, %s, s%d offen offset:128 sc1' % ((v(vFYA), srd(SWS), sFYP) * 2)
    yl = ['buffer_load_dwordx4 %s, %s, %s, s%d offen sc1' % (v(vY, 4), v(vYA), srd(SWS), sYA),
          'buffer_load_dwordx4 %s, %s, %s, s%d offen offset:64 sc1' % (v(vY + 4, 4), v(vYA), srd(SWS), sYA),
          'buffer_load_dwordx4 %s, %s, %s, s%d offen sc1' % (v(vY + 8, 4), v(vYA), srd(SWS), sYB)]
    def mf(j, db, tb):
        d = v(acc(db, tb), 4)
        return 'v_mfma_f32_16x16x32_bf16 %s, %s, %s, %s' % (d, stash_reg(j, db), hreg(j, tb), '0' if j == 0 else d)
    NT = opt('nt', 3)
    LA = opt('la', 2)
    assert RING > max(LA, NT) - 0
    xr, br = 160, 172
    assert vH + 16 * RING <= xr
    issued = 2
    jfy, jyc = opt('jfy', 6), opt('jyc', 8)
    for j in range(14 - NT):
        bench_begin('g2_%d' % j)
        M = [mf(j, db, tb) for tb in range(4) for db in range(5)]
        vm = []
        if j == 1: vm.append([lambda: e.wait_vm('y'), lambda: flag_store(sFY)])
        if j == opt('jh1', 2): vm.append((FH_LOAD, 'fh'))
        if j == 7 - LA: poll(vPL, 1, FH_LOAD, 'fh1')
        hi = min(14, j + LA + 1 + (NT - 1 if j == 13 - NT else 0))
        while issued < hi: vm += hl(issued); issued += 1
        if j == 0: vm += take(late, 0)
        elif j >= 2: vm += take(late, 2)
        if j == jfy: vm.append((fy, 'fy'))
        if j == jyc:
            e('v_and_b32 v2, v2, v3')
            e('v_cmp_ne_u32 s[70:71], 1, v2')
            vm += [(y, 'yl') for y in yl]
        if j == 9: vm += [('buffer_load_dwordx4 %s, %s, %s, s%d offen' % (v(xr + 4 * i, 4), v(vGO + i), srd(SX), sOUT), 'fx') for i in range(3)]
        if j == 10: vm += [('global_load_dwordx4 %s, %s, %s' % (v(br + 4 * i, 4), v(5 + i), sp(P_B2)), 'fb') for i in range(3)]
        put(sched(M, [], [], vm, stream, 2, 2))
        bench_end('g2_%d' % j)
        if j in (1, 5): stamp(14 + (j == 5))
        if j == 7: stamp(37)
    assert not late and not stream and issued == 14, (late, stream, issued)
    stamp(11)
    ok = lab('y_ok')
    e('s_cmp_eq_u64 s[70:71], 0')
    e('s_cbranch_scc1 %s' % ok)
    snap = e.snapshot()
    e.raw('    v_mov_b32 v2, 0')
    poll(2, 2, fy, 'fy')
    for y in yl: e.raw('    ' + y)
    e.raw('    s_waitcnt vmcnt(0)')
    e.restore(snap)
    e.raw(ok + ':')
    e.wait_vm('yl')
    stamp(38)
    labs = [lab('yv') for _ in range(5)]
    snap = e.snapshot()
    for w in range(4):
        e.restore(snap)
        e.raw(labs[w] + ':')
        if w < 3:
            e('s_cmp_lg_u32 s%d, %d' % (sW, w)); e('s_cbranch_scc1 %s' % labs[w + 1])
        for tb in range(4):
            d = v(acc(w, tb), 4)
            e('v_mfma_f32_16x16x32_bf16 %s, %s, %s, %s' % (d, v(vY + 4 * (tb >> 1), 4), v(vSEL + 4 * (tb & 1), 4), d))
        d = v(acc(4, w), 4)
        e('v_mfma_f32_16x16x32_bf16 %s, %s, %s, %s' % (d, v(vY + 8, 4), v(vSEL + 4 * (w & 1), 4), d))
        if w < 3: e('s_branch %s' % labs[4])
    e.raw(labs[4] + ':')
    e('s_barrier')
    XF = 196
    un = []
    for i in range(3):
        for k in range(4):
            d = XF + 8 * i + 2 * k
            un += ['v_lshlrev_b32 v%d, 16, %s' % (d, v(xr + 4 * i + k)), 'v_and_b32 v%d, 0xffff0000, %s' % (d + 1, v(xr + 4 * i + k)),
                   'v_lshlrev_b32 v13, 16, %s' % v(br + 4 * i + k), 'v_and_b32 v14, 0xffff0000, %s' % v(br + 4 * i + k),
                   'v_add_f32 v%d, v%d, v13' % (d, d), 'v_add_f32 v%d, v%d, v14' % (d + 1, d + 1)]
    prev = []
    for tb in range(4):
        M = [mf(j, db, tb) for j in range(14 - NT, 14) for db in range(5)]
        if tb == 0: put(M[:2]); M = M[2:]
        put(sched(M[:2], [], [], [], un, 2, 2) + sched(M[2:], [], [], prev, un, 2, 2))
        prev = ['ds_write_b128 %s, %s offset:%d' % (v(vRWr), v(acc(db, tb), 4), RED + tb * 5376 + db * 64) for db in range(5)]
    put(un)
    put(prev)
    e.barrier()
    stamp(12)
    PR = 16
    for i in range(3):
        for src in range(4):
            for h in range(2):
                e('ds_read_b128 %s, %s offset:%d' % (v(PR + 32 * i + 8 * src + 4 * h, 4), v(vLO + i), RED + src * 21504 + 16 * h))
    for i in range(3):
        for src in range(4):
            for k in range(4):
                e('v_pk_add_f32 %s, %s, %s' % (v(XF + 8 * i + 2 * k, 2), v(XF + 8 * i + 2 * k, 2), v(PR + 32 * i + 8 * src + 2 * k, 2)))
        for k in range(4): e('v_cvt_pk_bf16_f32 %s, %s, %s' % (v(120 + 4 * i + k), v(XF + 8 * i + 2 * k), v(XF + 8 * i + 2 * k + 1)))
        if i == 2: e('s_mov_b32 exec_hi, 0')
        e('buffer_store_dwordx4 %s, %s, %s, s%d offen' % (v(120 + 4 * i, 4), v(vGO + i), srd(SO), sOUT), tag='out')
    e('s_mov_b32 exec_hi, -1')
    if opt('chase', 0) >= 3:
        e('s_lshl_b32 s68, s2, 2'); e('s_add_u32 s68, s68, s%d' % sW); e('s_lshl_b32 s68, s68, 15'); e('s_add_u32 s68, s68, 0x4000000')
        e('s_mov_b32 s%d, 0x10000000' % (SWS + 2))
        for i in range(32):
            e('buffer_load_dwordx4 %s, v1, %s, s68 offen %s' % (v(16 + 4 * i, 4), srd(SWS), 'nt' if opt('chase', 0) == 4 else '')); e('s_add_u32 s68, s68, 1024')
        e('s_waitcnt vmcnt(0)')
    elif opt('chase', 0):
        e('s_cmp_lg_u32 s2, 0'); e('s_cbranch_scc1 L_end')
        e('s_load_dwordx2 s[68:69], s[0:1], %d' % (56 if opt('chase', 0) == 1 else 112))
        e('v_mov_b32 v13, %d' % (0 if opt('chase', 0) == 1 else 0x8000000)); e('s_mov_b32 s70, %d' % opt('chn', 128))
        e('s_waitcnt vmcnt(0) lgkmcnt(0)')
        e.raw('L_chase:')
        e('global_load_dword v14, v13, s[68:69]'); e('s_waitcnt vmcnt(0)'); e('v_and_b32 v14, 0, v14'); e('v_add3_u32 v13, v13, v14, 64'); e('v_add_u32 v13, 16320, v13')
        e('s_sub_u32 s70, s70, 1'); e('s_cmp_lg_u32 s70, 0'); e('s_cbranch_scc1 L_chase')
        e('s_branch L_end')
    if OPT['stamps']:
        stamp(13)
        e('s_lshl_b32 s68, s2, 2'); e('s_add_u32 s68, s68, s%d' % sW); e('s_lshl_b32 s68, s68, 8'); e('s_add_u32 s68, s68, %d' % STAMP)
        e('v_lshlrev_b32 v13, 2, v0')
        e('buffer_store_dword %s, v13, %s, s68 offen' % (v(vSTAMP), srd(SWS)))
        if opt('dbg', 0):
            e('v_readlane_b32 s68, %s, 0' % v(vSTAMP)); e('s_not_b32 s68, s68'); e('v_mov_b32 v14, s68'); e('v_mov_b32 v15, s%d' % sST)
            e('v_mov_b32 v13, 8'); e('s_mov_b64 exec, 1')
            e('global_atomic_umax v13, v14, %s' % sp(P_DBG)); e('global_atomic_umax v13, v15, %s offset:4' % sp(P_DBG))
            e('s_lshl_b32 s68, s2, 2'); e('s_add_u32 s68, s68, s%d' % sW); e('s_cmp_eq_u32 s68, %d' % (4 * opt('dbg', 0)))
            e('s_cselect_b64 exec, 0x3fff, 0'); e('v_lshlrev_b32 v13, 2, v0')
            e('s_cbranch_execz L_end')
            e('s_mov_b64 exec, 0x3ffc'); e('global_store_dword v13, %s, %s offset:8' % (v(vSTAMP), sp(P_DBG)))

def last_conv_items(stash, fh1):
    A, ld, chk, h = g2_pre()
    n = len(stash); k1 = n * opt('c1', 45) // 100; k2 = n * opt('c2', 70) // 100
    it = take(stash, k1 // 2) + (fh1 or []) + take(stash, k1 - k1 // 2) + A + [ld] + take(stash, k2 - k1)
    rest = take(stash, len(stash))
    return it + rest + [chk] + h

def full_path():
    prologue2('f')
    e('s_add_u32 s%d, s%d, s%d' % (sPAIR, sPAIR, sJ))
    dq = []
    for st in range(10):
        h, P = g1_dma(st)
        dq += [(st, h if i == 0 else None, p) for i, p in enumerate(P)]
    def dma(n): return [([h] if h else []) + [p[0], p[1]] for (_, h, p) in take(dq, n)]
    put(dma(opt('na', 2)))
    put(param_loads(sPAIR))
    put(late_setup()); e(LOAD_B)
    put(dma(opt('n0', 4)))
    stamp(30)
    put(ln_addr()); put(g1_read_addr()); put(gelu_addr())
    put(dma(opt('nb', 0)))
    put(bands())
    put(pack_addr()); put(pack_raddr()); put(unit_src(sPAIR, 2))
    scout('f', 2)
    layernorm(dma(opt('n1', 3)), dma(opt('n2', 3)), [(READY_LOAD, 'rdy')] + dma(opt('n3', 4)))
    stamp(1)
    early, late = split_stash()
    gemm1(early, dq)
    gelu(early)
    stamp(6)
    def mid():
        e.wait_vm('h0'); flag_store(sFH); e('s_add_u32 s%d, s%d, %d' % (sFH, sFH, FH1))
    ktail(0, [mid])
    stamp(7)
    fh1 = [[lambda: e.wait_vm('h1'), lambda: flag_store(sFH)]]
    conv(0, take(early, 3), lambda: last_conv_items(early, fh1))
    conv_finish()
    return e.snapshot(), late

def spare_path():
    e.raw('L_spare:')
    prologue2('s')
    e('s_sub_u32 s68, s%d, 28' % sJ); e('s_mul_i32 s69, s68, 3'); e('s_add_u32 s%d, s%d, s69' % (sPAIR, sPAIR)); e('s_add_u32 s%d, s%d, 28' % (sPAIR, sPAIR))
    put(late_setup())
    nc = lab('noclear')
    e('s_cmp_lg_u32 s2, 248'); e('s_cbranch_scc1 %s' % nc)
    r = lambda s: e.raw('    ' + s)
    r('v_mov_b32 v16, 0'); r('v_lshlrev_b32 v18, 7, v0'); r('s_lshl_b32 s70, s%d, 13' % sW); r('s_add_u32 s70, s70, %d' % FA)
    r('buffer_store_dword v16, v18, %s, s70 offen sc1' % srd(SWS))
    r('s_waitcnt vmcnt(0)'); r('s_barrier'); r('v_mov_b32 v17, 1'); r('s_mov_b64 exec, 1')
    r('global_store_dword v16, v17, %s sc1' % sp(P_DBG)); r('s_mov_b64 exec, -1')
    e.raw(nc + ':')
    put(pack_addr()); put(unit_src(71, 2)); put([list(p) for p in pack_dma(0, 71)])
    e('s_add_u32 s70, s2, 32'); put(unit_src(71, 70)); put([list(p) for p in pack_dma(1, 71)])
    put(param_loads(sPAIR, vPAR)); e('s_add_u32 s%d, s%d, 1' % (sPAIR, sPAIR))
    put(param_loads(sPAIR, 88, 102)); e('s_add_u32 s%d, s%d, 1' % (sPAIR, sPAIR))
    put(param_loads(sPAIR, 94, 104))
    if not opt('latesc', 0): e(LOAD_B)
    if opt('r1pos', 0) == 1: scout('s', 1)
    stamp(28)
    put(ln_addr()); put(pack_raddr()); put(tab_loads()); put(bands())
    scout('s', 2)
    layernorm([], [], [(READY_LOAD, 'rdy')], units=2)
    stamp(1)
    put(own_clear(3)); put(conv_addr(KTAB_SP)); put(w2_setup())
    for k in range(6): e('v_lshl_or_b32 v%d, v%d, 16, v%d' % (29 + k, 94 + k, 88 + k))
    e('s_mul_i32 s68, s%d, %d' % (sCH, CHP)); e('s_lshl_b32 s69, s%d, 8' % sO); e('s_add_u32 m0, s68, s69')
    early, late = split_stash()
    for it in range(3):
        if it == 1:
            for k in range(6): e('v_and_b32 %s, 0xffff, v%d' % (v(vPAR + k), 29 + k))
        if it == 2:
            for k in range(6): e('v_lshrrev_b32 %s, 16, v%d' % (v(vPAR + k), 29 + k))
        put(kgen_setup(True))
        rows = kgen_rows(True, lambda r: ['ds_write_addtid_b32 %s offset:%d' % (v(vKV + r), r * 528)])
        if it == 2: rows = rows[:100] + FAALL_ADDR + [(FAALL_LOAD, 'faall')] + rows[100:]
        put(rows)
        if it == 0: e.wait_vm(('u', 'pks'))
        if it == 2: poll(212, 1, FAALL_LOAD, 'faall', val=3)
        e.barrier()
        if it == 0: fa_publish(3)
        ktail(3072 * it, u_loads() + take(early, 4) if it == 2 else [])
        if it < 2: e.barrier()
        stamp(3 + it)
    stamp(7)
    for it in range(3):
        def nxt():
            L = take(early, opt('spc', 18))
            L = L[:2] + [['s_add_u32 s%d, s%d, 32' % (sUL0, sUL0), 's_add_u32 s%d, s%d, 32' % (sUL1, sUL1)]] + L[2:]
            if it: L = L[:6] + [[lambda: e.wait_vm('y'), lambda: flag_store(sFY), 's_add_u32 s%d, s%d, 256' % (sFY, sFY)]] + L[6:]
            return L
        def lastc():
            return last_conv_items(early, [[lambda: e.wait_vm('y'), lambda: flag_store(sFY), 's_add_u32 s%d, s%d, 256' % (sFY, sFY)]])
        conv(3072 * it, [], nxt if it < 2 else lastc, zero_pad=(it == 0))
        if it < 2: put(u_loads())
        conv_finish()
        if it < 2: e('s_add_u32 s%d, s%d, 8192' % (sYS, sYS))
    e('s_branch L_gemm2')
    mark('send')
    return e.snapshot()

def addresses(lines):
    import subprocess, re
    txt = '.amdgcn_target "amdgcn-amd-amdhsa--gfx950"\n.text\n'
    undef = sorted(set(re.findall(r'L_hop_\w+', '\n'.join(lines))))
    body = []
    for k, l in enumerate(lines): body.append('A_%d:\n%s' % (k, l))
    txt += '\n'.join(body) + '\n' + ''.join('%s:\n' % u for u in undef) + 'L_tab:\nL_tab_end:\nL_sc:\n'
    open('_a.s', 'w').write(txt)
    subprocess.check_call(['clang', '-x', 'assembler', '-target', 'amdgcn-amd-amdhsa', '-mcpu=gfx950', '-c', '_a.s', '-o', '_a.o'])
    out = subprocess.check_output(['llvm-objdump', '-t', '_a.o']).decode()
    ad = {}
    for l in out.splitlines():
        p = l.split()
        if p and p[-1].startswith('A_'): ad[int(p[-1][2:])] = int(p[0], 16)
    return [ad[k] for k in range(len(lines))]

def plant_hops(lines):
    if not opt('scout', 1): return lines
    ad = addresses(lines)
    pos = {l[:-1]: k for k, l in enumerate(lines) if l.endswith(':')}
    STEP = opt('hop', 1000)
    banned, inside = set(), False
    for k, l in enumerate(lines):
        if l.strip() == 's_mov_b64 exec, 0': inside = True
        if inside: banned.add(k)
        if l.strip() == 's_mov_b64 exec, -1': inside = False
    def points(a, b, skip=0):
        out, nxt = [], ad[a] + skip
        for k in range(a, b):
            if ad[k] >= nxt and k not in banned and not lines[k].endswith(':') and not lines[k].startswith(';'): out.append(k); nxt = ad[k] + STEP
        return out
    g2 = points(pos['L_gemm2'], pos['L_end'])
    plan = {}
    f = points(pos['L_ret_f_0'], pos['L_gemm2'], STEP) + g2
    sp_ = points(pos['L_ret_s_0'], pos['L_mk_send'], STEP) + g2
    ins = {}
    for role, pts in (('f', f), ('s', sp_)):
        n0, n1, n2 = opt('h0', 1), opt('h1', 2), opt('h2', 2)
        rounds = [take(pts, 4 * n0)]
        if role == 'f' and opt('prio', 1):
            g = pos['L_mk_gelu']; c = pos['L_mk_g1_%d' % opt('g1w', 3)]
            pts = [p for p in pts if p < c] + [p for p in pts if p >= g] + [p for p in pts if c <= p < g]
        rounds += [take(pts, 4 * n1), take(pts, 4 * n2)]
        print(role, 'unwarmed KB', len(pts))
        for r, P in enumerate(rounds):
            n = (len(P) + 3) // 4
            for w in range(4):
                chain = P[w * n:(w + 1) * n]
                ret = 'L_ret_%s_%d' % (role, r)
                first = 'L_hop_%s_%d_%d' % (role, r, w)
                if not chain: ins.setdefault(pos[ret], []).append(first + ':'); continue
                for q, k in enumerate(chain):
                    me = first if q == 0 else '%s_%d' % (first, q)
                    nx = ret if q == len(chain) - 1 else '%s_%d' % (first, q + 1)
                    ins.setdefault(k, []).extend([me + ':', '    s_cbranch_execz %s' % nx])
    out = []
    for k, l in enumerate(lines):
        out += ins.get(k, []); out.append(l)
    return out

def main():
    prologue()
    snap = e.snapshot()
    sf, late = full_path()
    mainout = e.out
    e.out = []
    e.restore(snap)
    ss = spare_path()
    spout = e.out
    e.out = mainout
    m_ = min(len(sf[0]), len(ss[0]))
    k = 0
    while k < m_ and sf[0][-1 - k] == ss[0][-1 - k]: k += 1
    assert k >= 10, k
    allregs = set()
    for x in sf[0][:len(sf[0]) - k] + ss[0][:len(ss[0]) - k]: allregs |= x['regs']
    e.restore(sf)
    e.vm = [dict(regs=allregs, tag='old', opt=True)] + sf[0][len(sf[0]) - k:]
    e.defd &= ss[3]
    e.raw('L_gemm2:')
    gemm2(late)
    e.raw('L_end:')
    e('s_endpgm')
    e.out = plant_hops(e.out + spout)
    hdr = open('parallel_sum__ssm_conv_s4d__mixer_channel_mlp__prompt.s.ref').read().split('; Override launch')[0]
    s = hdr + '; @launch grid=(256,1,1) block=(256,1,1) lds=%d\n' % LDS_BYTES
    s += '.amdgcn_target "amdgcn-amd-amdhsa--gfx950"\n.text\n.globl %s\n.p2align 8\n.type %s,@function\n%s:\n' % (KN, KN, KN)
    s += e.text()
    s += '.p2align 7\n.type L_tab,@object\nL_tab:\n'
    tab = T.gather_table()
    for k in range(0, len(tab), 8): s += '.long ' + ', '.join('0x%08x' % x for x in tab[k:k + 8]) + '\n'
    s += 'L_tab_end:\n.size L_tab, L_tab_end-L_tab\n.p2align 7\n.type L_sc,@object\nL_sc:\n'
    tab = scalar_table()
    for k in range(0, len(tab), 16): s += '.long ' + ','.join('%d' % x for x in tab[k:k + 16]) + '\n'
    s += 'L_sc_end:\n.size L_sc, L_sc_end-L_sc\n'
    s += '''.section .rodata,"a"
.p2align 6
.amdhsa_kernel %s
  .amdhsa_next_free_vgpr 512
  .amdhsa_next_free_sgpr 102
  .amdhsa_accum_offset 256
  .amdhsa_group_segment_fixed_size 0
  .amdhsa_kernarg_size 120
  .amdhsa_user_sgpr_count 2
  .amdhsa_user_sgpr_kernarg_segment_ptr 1
  .amdhsa_system_sgpr_workgroup_id_x 1
  .amdhsa_float_denorm_mode_32 3
.end_amdhsa_kernel
''' % KN
    open(sys.argv[1], 'w').write(s)
    print('instructions', e.nins, 'nops', e.nnop)

main()
```
